```python
import torch

def _softmax(x, axis=-1):
    return torch.softmax(x, dim=axis)

def _gelu(x):
    return torch.nn.functional.gelu(x, approximate='tanh')

def _silu(x):
    return torch.nn.functional.silu(x)

def _sigmoid(x):
    return torch.sigmoid(x)

def _layernorm(x, axis=-1, eps=1e-05):
    m = x.mean(dim=axis, keepdim=True)
    v = x.var(dim=axis, keepdim=True, unbiased=False)
    return (x - m) / torch.sqrt(v + eps)

def _scatter_add(tgt, idx, src, axis=0):
    return tgt.clone().index_add_(axis, idx, src)

def _segment_sum(src, seg, n):
    out = torch.zeros((n,) + src.shape[1:], dtype=src.dtype)
    return out.index_add_(0, seg, src)

def _pad(x, pw):
    flat = tuple((v for pair in reversed(pw) for v in pair))
    return torch.nn.functional.pad(x, flat)
kernel_name = 'recurrent_scan__memory_aug_recurrent_mem_tr__mixer_s_mlp__prompt'

def setup_inputs():

    _w = lambda a: (lambda t: t.to(torch.bfloat16) if t.is_floating_point() else t)(torch.as_tensor(a))

    def _A_setup():
        B, S, Dm = (1, 2048, 512)
        H, Dh = (32, 128)
        M, seg = (8, 32)
        seg = min(seg, S)
        S = S // seg * seg
        return {'x': _w((lambda *s: torch.randn(*s, dtype=torch.bfloat16) * 0.05)(B, S, Dm)), 'mem0': _w((lambda *s: torch.randn(*s, dtype=torch.bfloat16) * 0.2)(B, M, Dm)), 'Wq': _w((lambda *s: torch.randn(*s, dtype=torch.bfloat16) * 1.6)(Dm, H, Dh) * Dm ** (-0.5)), 'Wk': _w((lambda *s: torch.randn(*s, dtype=torch.bfloat16) * 1.6)(Dm, H, Dh) * Dm ** (-0.5)), 'Wv': _w((lambda *s: torch.randn(*s, dtype=torch.bfloat16) * 0.2)(Dm, H, Dh) * Dm ** (-0.5)), 'Wo': _w((lambda *s: torch.randn(*s, dtype=torch.bfloat16) * 0.2)(H, Dh, Dm) * (H * Dh) ** (-0.5)), 'seg_len': seg}
    _A_in = _A_setup()

    def _B_setup():
        B, S, D, F = (1, 2048, 512, 1376)
        return {'x': _w((lambda *s: torch.randn(*s, dtype=torch.bfloat16) * 0.05)(B, S, D)), 'w1': _w((lambda *s: torch.randn(*s, dtype=torch.bfloat16) * 3.2)(D, D) * D ** (-0.5)), 'w2': _w((lambda *s: torch.randn(*s, dtype=torch.bfloat16) * 3.2)(D, D) * D ** (-0.5)), 'w3': _w((lambda *s: torch.randn(*s, dtype=torch.bfloat16) * 3.2)(D, F) * D ** (-0.5)), 'w4': _w((lambda *s: torch.randn(*s, dtype=torch.bfloat16) * 3.2)(F, D) * F ** (-0.5))}
    _B_in = _B_setup()
    return {'A_x': _A_in['x'], 'A_mem0': _A_in['mem0'], 'A_Wq': _A_in['Wq'], 'A_Wk': _A_in['Wk'], 'A_Wv': _A_in['Wv'], 'A_Wo': _A_in['Wo'], 'A_seg_len': _A_in['seg_len'], 'B_x': _B_in['x'], 'B_w1': _B_in['w1'], 'B_w2': _B_in['w2'], 'B_w3': _B_in['w3'], 'B_w4': _B_in['w4']}

def reference(A_x, A_mem0, A_Wq, A_Wk, A_Wv, A_Wo, A_seg_len, B_x, B_w1, B_w2, B_w3, B_w4):

    def _A_ref(x, mem0, Wq, Wk, Wv, Wo, seg_len):
        B, S, Dm = x.shape
        H, Dh = (Wq.shape[1], Wq.shape[2])
        M = mem0.shape[1]
        scale = Dh ** (-0.5)
        n_seg = S // seg_len
        L = M + seg_len
        idx = torch.arange(L)
        mask = (idx[:, None] < M) | (idx[:, None] >= idx[None, :])
        mem = mem0
        outs = []
        for s in range(n_seg):
            xs = x[:, s * seg_len:(s + 1) * seg_len, :].clone()
            h = torch.concatenate([mem, xs], axis=1)
            q = torch.einsum('btd,dhe->bhte', h, Wq)
            k = torch.einsum('btd,dhe->bhte', h, Wk)
            v = torch.einsum('btd,dhe->bhte', h, Wv)
            scores = torch.einsum('bhqe,bhke->bhqk', q, k) * scale
            scores = torch.where(mask[None, None], scores, -1000000000.0)
            p = _softmax(scores, axis=-1)
            o = torch.einsum('bhqk,bhke->bhqe', p, v)
            o = torch.einsum('bhte,hed->btd', o, Wo)
            mem = o[:, :M, :].clone()
            outs.append(o[:, M:, :])
        return torch.concatenate(outs, axis=1)

    def _B_ref(x, w1, w2, w3, w4):
        B, S, D = x.shape
        h = _gelu(_layernorm(x, axis=-1) @ w1)
        c = D // 4
        g0 = _pad(h[:, :, 0 * c:1 * c], ((0, 0), (1, 0), (0, 0)))[:, :S, :]
        g1 = _pad(h[:, :, 1 * c:2 * c], ((0, 0), (0, 1), (0, 0)))[:, 1:, :]
        g2 = _pad(h[:, :, 2 * c:3 * c], ((0, 0), (2, 0), (0, 0)))[:, :S, :]
        g3 = _pad(h[:, :, 3 * c:], ((0, 0), (0, 2), (0, 0)))[:, 2:, :]
        hs = torch.concatenate([g0, g1, g2, g3], axis=-1) @ w2
        x1 = x + hs
        h2 = _gelu(_layernorm(x1, axis=-1) @ w3) @ w4
        return x1 + h2
    x = A_x
    xn = _layernorm(x, axis=-1)
    s = _A_ref(xn, A_mem0, A_Wq, A_Wk, A_Wv, A_Wo, A_seg_len)
    g = _silu(_B_ref(xn, B_w1, B_w2, B_w3, B_w4))
    return x + s * g
```

```python
import re

TRANS = ("v_exp_f32", "v_log_f32", "v_rcp_f32", "v_rsq_f32", "v_sqrt_f32", "v_sin_f32", "v_cos_f32",
         "v_rcp_iflag_f32")

def mfma_passes(op):
    if "32x32x16" in op or "32x32x8" in op or "32x32x32" in op: return 8
    if "16x16x32" in op or "16x16x16" in op or "16x16x64" in op: return 4
    raise ValueError(op)

_reg = re.compile(r"^(-?)(?:abs\()?([vas])(\d+|\[(\d+):(\d+)\])\)?$")

def regs_of(tok):
    tok = tok.strip()
    if tok.startswith("|") and tok.endswith("|"): tok = tok[1:-1]
    if tok.startswith("-|") and tok.endswith("|"): tok = tok[2:-1]
    if tok in ("vcc", "exec"): return [(tok, 0), (tok, 1)]
    if tok in ("vcc_lo", "exec_lo"): return [(tok[:-3], 0)]
    if tok in ("vcc_hi", "exec_hi"): return [(tok[:-3], 1)]
    if tok == "m0": return [("m0", 0)]
    m = _reg.match(tok)
    if not m: return []
    k = m.group(2)
    if m.group(4) is not None:
        return [(k, i) for i in range(int(m.group(4)), int(m.group(5)) + 1)]
    return [(k, int(m.group(3)))]

class Ins:
    __slots__ = ("text", "op", "ops", "mods", "kind", "wr", "rd", "passes", "srcc", "srcab", "nopn", "target",
                 "label", "stdata", "dpp", "comment")
    def __init__(self, text):
        self.text = text
        self.label = None; self.target = None; self.kind = None
        self.wr = set(); self.rd = set(); self.passes = 0; self.srcc = set(); self.srcab = set()
        self.nopn = 0; self.stdata = set(); self.dpp = False
        t = text.split(";")[0].strip()
        if not t: self.kind = "none"; self.op = ""; return
        if t.endswith(":"): self.kind = "label"; self.label = t[:-1]; self.op = ""; return
        if t.startswith("."): self.kind = "dir"; self.op = t; return
        parts = t.split(None, 1)
        op = parts[0]; self.op = op
        rest = parts[1] if len(parts) > 1 else ""
        toks = [x.strip() for x in rest.split(",")] if rest else []
        mods = ""
        if toks:
            last = toks[-1].split(None, 1)
            if len(last) > 1 and not op.startswith("s_waitcnt") and not op.startswith("s_getreg") and not op.startswith("s_setreg"):
                toks[-1] = last[0]; mods = last[1]
        self.ops = toks; self.mods = mods
        R = lambda i: set(regs_of(toks[i])) if i < len(toks) else set()
        allr = lambda a: set().union(*[R(i) for i in range(a, len(toks))]) if len(toks) > a else set()
        base = op.replace("_e32", "").replace("_e64", "")
        if op.startswith("v_mfma") or op.startswith("v_smfmac"):
            self.kind = "mfma"; self.passes = mfma_passes(op)
            self.wr = R(0); self.srcab = R(1) | R(2)
            if op.startswith("v_smfmac"):
                self.srcc = R(0); self.srcab |= R(3)
            else:
                self.srcc = R(3)
            self.rd = self.srcab | self.srcc
        elif op.startswith("v_"):
            self.kind = "valu"
            self.dpp = ("_dpp" in op) or ("row_" in mods) or ("quad_perm" in mods) or ("wave_" in mods)
            if base.startswith("v_cmp"):
                self.wr = R(0); self.rd = allr(1)
                if base.startswith("v_cmpx"): self.wr |= {("exec", 0), ("exec", 1)}
            elif base.startswith("v_permlane") and "swap" in base:
                self.wr = R(0) | R(1); self.rd = R(0) | R(1)
            elif base in ("v_readfirstlane_b32", "v_readlane_b32"):
                self.wr = R(0); self.rd = allr(1)
            elif base in ("v_add_co_u32", "v_sub_co_u32", "v_addc_co_u32", "v_subb_co_u32", "v_subrev_co_u32"):
                self.wr = R(0) | R(1); self.rd = allr(2)
            else:
                self.wr = R(0); self.rd = allr(1)
                if base.startswith("v_fmac") or base.startswith("v_pk_fmac") or base.startswith("v_dot2c") or base == "v_writelane_b32" or self.dpp:
                    self.rd |= R(0)
                if base.startswith("v_cndmask") and len(toks) == 3:
                    self.rd |= {("vcc", 0), ("vcc", 1)}
        elif op.startswith("ds_"):
            self.kind = "ds"
            if op.startswith("ds_read") or op.startswith("ds_bpermute") or op.startswith("ds_permute") or op.startswith("ds_swizzle") or "_rtn" in op:
                self.wr = R(0); self.rd = allr(1)
            else:
                self.rd = allr(0)
        elif op.startswith("buffer_") or op.startswith("global_"):
            self.kind = "vmem"
            lds = (" lds" in " " + mods) or op.startswith("global_load_lds")
            if op in ("buffer_wbl2", "buffer_inv"):
                pass
            elif lds:
                self.rd = allr(0) | {("m0", 0)}
            elif "load" in op:
                self.wr = R(0); self.rd = allr(1)
            elif "atomic" in op:
                self.rd = allr(0)
                if "sc0" in mods:
                    self.wr = R(0)
            else:
                self.rd = allr(0)
                if op.startswith("buffer_store"): d = R(0)
                else: d = R(1)
                if "x4" in op or "x3" in op: self.stdata = d
        elif op == "s_nop":
            self.kind = "nop"; self.nopn = int(toks[0], 0) + 1
        elif op.startswith("s_cbranch") or op == "s_branch":
            self.kind = "branch"; self.target = toks[0]
        elif op == "s_endpgm":
            self.kind = "end"
        elif op.startswith("s_load") or op in ("s_memtime", "s_memrealtime"):
            self.kind = "smem"; self.wr = R(0); self.rd = allr(1)
        elif op.startswith("s_waitcnt") or op in ("s_barrier", "s_sleep", "s_setprio"):
            self.kind = "sys"
        elif op.startswith("s_"):
            self.kind = "salu"
            if op.startswith("s_cmp") or op.startswith("s_bitcmp"):
                self.rd = allr(0)
            else:
                self.wr = R(0); self.rd = allr(1)
                if "saveexec" in op: self.wr |= {("exec", 0), ("exec", 1)}
        else:
            raise ValueError("unknown instruction: " + text)

    def states(self):
        if self.kind in ("none", "label", "dir"): return 0
        if self.kind == "nop": return self.nopn
        return 1

def is_vec(r): return r[0] in ("v", "a")
def is_sg(r): return r[0] in ("s", "vcc")

XDL_RW = {2: 5, 4: 8, 8: 12, 16: 20}
XDL_OVL = {2: 4, 4: 6, 8: 10, 16: 18}
XDL_WARC = {2: 1, 4: 3, 8: 7, 16: 15}

def need(p, c):
    n = 0
    base_c = c.op
    if p.kind == "valu":
        pv = {r for r in p.wr if is_vec(r)}
        ps = {r for r in p.wr if is_sg(r)}
        pe = {r for r in p.wr if r[0] == "exec"}
        if c.kind == "mfma":
            if pv & c.rd: n = max(n, 2)
            if pe: n = max(n, 4)
        if c.kind == "valu":
            if c.dpp and (pv & c.rd): n = max(n, 2)
            if c.dpp and pe: n = max(n, 5)
            if base_c.startswith("v_permlane") and (pv & c.rd): n = max(n, 2)
            if base_c.startswith("v_permlane") and pe: n = max(n, 4)
            if base_c.startswith(("v_readlane", "v_readfirstlane")) and (pv & c.rd): n = max(n, 1)
            if base_c.startswith(("v_readlane", "v_readfirstlane", "v_writelane")) and pe: n = max(n, 4)
            if ps & c.rd:
                n = max(n, 4 if base_c.startswith(("v_readlane", "v_writelane")) else 2)
            if pe & c.rd: n = max(n, 2)
            if p.op.replace("_e32", "").replace("_e64", "") in TRANS and (pv & c.rd): n = max(n, 1)
            if (("op_sel" in p.mods and not p.op.startswith("v_pk_")) or "sdwa" in p.op or "dst_sel" in p.mods) and (pv & (c.rd | c.wr)): n = max(n, 1)
        if c.kind == "vmem" and (ps & c.rd): n = max(n, 5)
        if c.kind in ("salu", "branch") and ps and (ps & c.rd): n = max(n, 1)
    if p.kind == "salu":
        if ("m0", 0) in p.wr and c.kind == "vmem" and ("m0", 0) in c.rd: n = max(n, 1)
    if p.kind == "vmem" and p.stdata:
        if c.wr & p.stdata: n = max(n, 2 if c.kind == "valu" else 1)
    if p.kind == "mfma":
        D = p.wr
        if c.kind == "mfma":
            if D & c.srcab: n = max(n, XDL_RW[p.passes])
            if D & c.srcc:
                if c.srcc == D and c.passes == p.passes: n = max(n, 2 if p.passes == 2 else 0)
                else: n = max(n, XDL_OVL[p.passes])
            elif D & c.wr: n = max(n, XDL_OVL[p.passes])
        elif c.kind in ("valu", "ds", "vmem"):
            if D & (c.rd | c.wr): n = max(n, XDL_RW[p.passes])
            if c.kind == "valu" and (p.srcc & c.wr): n = max(n, XDL_WARC[p.passes])
    return n

class Asm:
    def __init__(self, mfma_time=0):
        self.ins = []
        self.mfma_time = mfma_time
        self.uid = 0
    def __call__(self, text):
        for line in text.split("\n"):
            self.ins.append(Ins(line))
    def label(self, name): self(name + ":")
    def newlabel(self, base):
        self.uid += 1
        return "%s_%d" % (base, self.uid)

    def fix(self, verbose=False):
        ins = self.ins
        n = len(ins)
        lab = {x.label: i for i, x in enumerate(ins) if x.kind == "label"}
        preds = [[] for _ in range(n)]
        for i, x in enumerate(ins):
            if x.kind == "branch":
                if x.target in lab: preds[lab[x.target]].append(i)
                if x.op != "s_branch" and i + 1 < n: preds[i + 1].append(i)
            elif x.kind == "end":
                pass
            elif i + 1 < n:
                preds[i + 1].append(i)
        pre = [0] * n
        def elapsed(path):
            t = 0; lm = 0; ld = ins[path[0]].passes; prev = 1
            plain = 0
            for q in path[1:]:
                x = ins[q]
                if x.states() == 0 and q != path[-1]:
                    continue
                t = t + prev + pre[q]
                plain = t
                if x.kind == "mfma":
                    t = max(t, lm + ld); lm = t; ld = x.passes
                prev = x.states()
            return t, plain
        changed = True
        while changed:
            changed = False
            for i, c in enumerate(ins):
                if c.kind not in ("mfma", "valu", "ds", "vmem", "salu", "branch"): continue
                worst = 0
                stack = [(p, pre[i], (i,)) for p in preds[i]]
                seen = {}
                while stack:
                    j, d, path = stack.pop()
                    if d >= 20: continue
                    if not self.mfma_time:
                        if seen.get(j, 99) <= d: continue
                        seen[j] = d
                    p = ins[j]
                    path = (j,) + path
                    k = need(p, c) if p.kind in ("valu", "salu", "vmem", "mfma") else 0
                    if k > d:
                        if p.kind == "mfma" and self.mfma_time:
                            t, plain = elapsed(path)
                            if t < k + 1: worst = max(worst, k + 1 - plain)
                        else:
                            worst = max(worst, k - d)
                    st = p.states() + pre[j]
                    for q in preds[j]:
                        stack.append((q, d + st, path))
                if worst > 0:
                    pre[i] += worst
                    changed = True
        out = []
        total = 0
        for i, c in enumerate(ins):
            w = pre[i]
            total += w
            if w and verbose: print("nop %d before: %s" % (w, c.text))
            while w > 0:
                t = min(w, 16)
                out.append(Ins("    s_nop %d" % (t - 1)))
                w -= t
            out.append(c)
        self.ins = out
        return total

    def _paced(self, ins, preds, pre, j):
        k = j
        if pre[j]: return False
        while True:
            if len(preds[k]) != 1: return False
            k = preds[k][0]
            if ins[k].kind in ("none", "dir"): continue
            return ins[k].kind == "mfma"

    def text(self):
        return "\n".join(x.text for x in self.ins) + "\n"
```

```python
from common import *
sX = "s25"; sN = "s26"; sI = "s27"; sSeg = "s28"; sQ = "s29"; sK = "s32"; sKMo = "s33"; sPAw = "s34"; sC = "s35"
sPAr = "s82"; sFM = "s83"; sFG = "s84"; sFAw = "s85"; sFAr = "s86"; sO = "s87"
MK = lambda i: "s[%d:%d]" % (66 + 2 * i, 67 + 2 * i)
S_OUT = "s[8:11]"; S_X = "s[16:19]"
QB, KX, VX, KMr, VMr, S0, S1, S2, PX, PY, T = 0, 16, 48, 80, 96, 112, 116, 120, 124, 128, 130
OT, OB, WA, PK = 140, 172, 188, 220
SELA, VL16, VR, VO, VFL, XG = 236, 240, 241, 242, 243, 248
def attn(a, opt):
    cvt = lambda d, s0, s1=None: "    v_cvt_pk_bf16_f32 v%d, v%d, v%d" % (d, s0, s0 + 1 if s1 is None else s1)
    ld4 = lambda r, so, off=0, v=VL16: "    buffer_load_dwordx4 %s, v%d, s[4:7], %s offen offset:%d sc1" % (vr(r), v, so, off)
    a("""    s_barrier
    v_mbcnt_lo_u32_b32 v0, -1, 0
    v_mbcnt_hi_u32_b32 v0, -1, v0
    s_mov_b32 s8, s%d
    s_mov_b32 s9, s%d
    v_lshlrev_b32 v%d, 4, v0
    s_and_b32 s30, s20, 1
    s_lshl_b32 s30, s30, 7
    v_xor_b32 v1, s30, v%d
    s_lshl_b32 s82, s21, 17
    s_lshl_b32 s83, s20, 12
    s_add_u32 s82, s82, s83""" % (P_WO, P_WO + 1, VL16, VL16))
    for i in range(4): a("    v_xor_b32 v%d, %d, v1" % (2 + i, i << 5))
    for c in range(8):
        for i in range(4):
            a("    s_add_u32 m0, s83, 0x%x\n    s_add_u32 s31, s82, 0x%x" % (c * 16384 + i * 1024, c * 16384 + i * 1024))
            a("    buffer_load_dwordx4 v%d, s[8:11], s31 offen lds" % (2 + i))
    a("""    v_lshrrev_b32 v1, 2, v0
    v_and_b32 v2, 7, v1
    v_lshlrev_b32 v2, 5, v2
    v_lshl_add_u32 v1, v1, 10, v2
    v_and_b32 v3, 3, v0
    v_lshl_add_u32 v1, v3, 3, v1
    s_and_b32 s30, s20, 1
    s_lshl_b32 s30, s30, 9
    v_add_u32 v1, s30, v1""")
    for c in range(8): a("    v_xor_b32 v%d, %d, v1\n    v_add_u32 v%d, 0x10000, v%d" % (8 + c, c << 5, 16 + c, 8 + c))
    a("""    s_sub_u32 %s, s23, 2
    s_cmp_lt_u32 %s, 4
    s_cselect_b32 %s, 11, 10
    s_mov_b32 %s, 0
    s_mov_b32 %s, %s
    s_mov_b32 %s, 0x3e0293ee
    s_lshr_b32 s30, s20, 1
    s_lshl_b32 s31, s30, 4
    v_and_b32 v1, 15, v0
    v_add_u32 v2, s31, v1                       ; token index in the segment
    v_lshrrev_b32 v3, 4, v0
    v_lshlrev_b32 v4, 2, v3                     ; 4g""" % (sX, sX, sN, sI, sSeg, sX, sC))
    for kt in range(2):
        for r in range(4): a("    v_add_u32 v5, %d, v4\n    v_cmp_le_u32 %s, v5, v2" % (16 * kt + r, MK(4 * kt + r)))
    a("""    v_lshlrev_b32 v5, 4, v1
    v_lshl_add_u32 v%d, v3, 10, v5
    v_lshlrev_b32 v5, 10, v1
    v_lshl_add_u32 v%d, v3, 5, v5
    v_and_b32 v5, 1, v0
    v_lshlrev_b32 v5, 4, v5
    v_mov_b32 v6, 0x3f80
    v_lshlrev_b32 v6, v5, v6
    v_lshrrev_b32 v5, 1, v1""" % (VR, VO))
    for r in range(4): a("    v_cmp_eq_u32 vcc, %d, v5\n    v_cndmask_b32 v%d, 0, v6, vcc" % (r, SELA + r))
    a("""    s_lshl_b32 s31, %s, 5
    s_add_u32 s31, s31, s21
    s_lshl_b32 %s, s31, 13
    s_add_u32 %s, %s, 0x%x
    s_lshl_b32 %s, s31, 14
    s_add_u32 %s, %s, 0x%x
    s_lshl_b32 %s, s31, 13
    s_lshl_b32 s31, s30, 12
    s_add_u32 %s, %s, s31
    s_add_u32 %s, %s, 0x%x
    s_lshl_b32 s31, s21, 10
    s_add_u32 %s, s31, 0x%x
    s_lshl_b32 %s, %s, 21
    s_add_u32 %s, %s, 0x%x
    s_add_u32 %s, %s, s31
    s_and_b32 s31, s20, 1
    s_lshl_b32 s31, s31, 19
    s_add_u32 %s, %s, s31
    s_lshl_b32 s31, s30, 15
    s_add_u32 %s, %s, s31
    s_lshl_b32 s31, s21, 15
    s_add_u32 %s, %s, s31
    s_lshl_b32 s31, s20, 8
    s_add_u32 %s, %s, s31
    s_lshl_b32 %s, %s, 9
    s_add_u32 %s, %s, 0x%x
    s_lshl_b32 s31, s20, 7
    s_add_u32 %s, %s, s31
    s_lshl_b32 s31, s21, 2
    s_add_u32 %s, %s, s31
    s_and_b32 s31, s21, 1
    s_lshl_b32 s31, s31, 8
    s_add_u32 %s, %s, s31
    s_lshr_b32 s31, s21, 4
    s_lshl_b32 s31, s31, 7
    s_add_u32 %s, %s, s31
    s_lshl_b32 %s, %s, 15
    s_and_b32 s31, s21, 1
    s_lshl_b32 s31, s31, 14
    s_add_u32 %s, %s, s31
    s_lshr_b32 s31, s21, 1
    s_lshl_b32 s31, s31, 6
    s_add_u32 %s, %s, s31
    s_lshl_b32 s31, s20, 3
    s_add_u32 %s, %s, s31""" % (sX, sKMo, sKMo, sKMo, KM, sK, sK, sK, KV, sQ, sQ, sQ, sQ, sQ, QF, sFM, FL_M,
                                sPAr, sX, sPAr, sPAr, PA, sPAw, sPAr, sPAw, sPAw, sPAw, sPAw, sPAr, sPAr, sPAr, sPAr,
                                sFAr, sX, sFAr, sFAr, FL_A, sFAw, sFAr, sFAw, sFAw, sFAr, sFAr, sFAr, sFAr,
                                sO, sX, sO, sO, sO, sO, sO, sO))
    a("    s_waitcnt vmcnt(0)\n    s_barrier")
    for k in range(4):
        for hi in range(2):
            ch = 2 * k + hi
            for c in range(16):
                a("    ds_read_b64_tr_b16 %s, v%d offset:%d" % (ar(16 * c + 4 * k + 2 * hi, 2), (16 if ch >= 4 else 8) + (c & 7), (ch & 3) * 16384 + (c >> 3) * 256))
    srd(a, S_OUT, P_OUT, 2 * MB)
    srd(a, S_X, P_X, 2 * MB)
    a("""    s_lshl_b32 s30, s21, 10
    s_lshl_b32 s31, %s, 4
    s_add_u32 s30, s30, s31
    s_add_u32 s30, s30, 0x%x
L_AKV:
    buffer_load_dwordx4 %s, off, s[4:7], s30 sc1
    s_waitcnt vmcnt(0)
    v_min_u32 v%d, v%d, v%d
    v_min3_u32 v%d, v%d, v%d, v%d
    v_cmp_gt_u32 vcc, %s, v%d
    s_cbranch_vccz L_AKV2
    s_sleep 8""" % (sX, FL_KV, vr(T + 2), T + 2, T + 2, T + 3, T + 2, T + 2, T + 4, T + 5, sN, T + 2))
    spin(a, "L_AKV")
    a("L_AKV2:\n    s_waitcnt lgkmcnt(0)")
    def prefetch():
        for k in range(4): a(ld4(QB + 4 * k, sQ, 1024 * k))
        a("    s_mov_b32 s30, %s" % sK)
        for k in range(4):
            for j in range(2): a(ld4(KX + 8 * k + 4 * j, "s30", 1024 * j))
            for j in range(2): a(ld4(VX + 8 * k + 4 * j, "s30", 2048 + 1024 * j))
            if k < 3: a("    s_add_u32 s30, s30, 4096")
    prefetch()
    m32 = lambda d, x, y, c: "    v_mfma_f32_16x16x32_bf16 %s, %s, %s, %s" % (vr(d), x, y, c)
    a("L_AU:")
    a("""    s_lshr_b32 s30, %s, 1
    s_lshl_b32 s30, s30, 10
    s_add_u32 %s, s30, 0x%x
    s_waitcnt vmcnt(0)""" % (sSeg, sFG, FL_G))
    for k in range(4):
        a(m32(S0, vr(KX + 8 * k), vr(QB + 4 * k), vr(S0) if k else "0"))
        a(m32(S1, vr(KX + 8 * k + 4), vr(QB + 4 * k), vr(S1) if k else "0"))
    a("""L_AM:
    buffer_load_dwordx4 %s, off, s[4:7], %s sc1
    buffer_load_dword v%d, off, s[4:7], %s sc1
    s_waitcnt vmcnt(0)
    v_min_u32 v%d, v%d, v%d
    v_min3_u32 v%d, v%d, v%d, v%d
    v_cmp_ge_u32 vcc, %s, v%d
    s_cbranch_vccnz L_AMR""" % (vr(T + 2), sFM, T + 6, sFG, T + 2, T + 2, T + 3, T + 2, T + 2, T + 4, T + 5, sSeg, T + 2))
    if opt.get("B"): a("    v_cmp_eq_u32 vcc, 0, v%d\n    s_cbranch_vccnz L_AMR" % (T + 6))
    a("    s_add_u32 s30, %s, 4096" % sKMo)
    for k in range(4): a(ld4(KMr + 4 * k, sKMo if k < 2 else "s30", 2048 * (k & 1)))
    for k in range(4): a(ld4(VMr + 4 * k, sKMo if k < 2 else "s30", 2048 * (k & 1) + 1024))
    a("""    s_mov_b32 exec_hi, 0
    s_add_u32 s30, %s, 0x%x
    buffer_load_dwordx2 %s, v%d, %s, %s offen
    buffer_load_dwordx2 %s, v%d, s[4:7], s30 offen sc1
    s_mov_b32 exec_hi, -1
    v_mov_b32 v%d, 0xff7fffff""" % (sO, GG, vr(XG, 2), VO, S_X, sO, vr(XG + 2, 2), VO, T))
    for i in range(8): a("    v_cndmask_b32 v%d, v%d, v%d, %s" % (S0 + i, T, S0 + i, MK(i)))
    a("""    v_max3_f32 v%d, v%d, v%d, v%d
    v_max3_f32 v%d, v%d, v%d, v%d
    v_max3_f32 v%d, v%d, v%d, v%d
    v_max_f32 v%d, v%d, v%d""" % (T, S0, S0 + 1, S0 + 2, T + 1, S0 + 3, S1, S1 + 1, T, T, S1 + 2, S1 + 3, T, T, T + 1))
    for k in range(4):
        a("    s_waitcnt vmcnt(%d)" % (9 - k))
        a(m32(S2, vr(KMr + 4 * k), vr(QB + 4 * k), vr(S2) if k else "0"))
    def allred(op, r):
        a("""    v_mov_b32 v%d, v%d
    v_permlane16_swap_b32 v%d, v%d
    %s v%d, v%d, v%d
    v_mov_b32 v%d, v%d
    v_permlane32_swap_b32 v%d, v%d
    %s v%d, v%d, v%d""" % (r + 1, r, r, r + 1, op, r, r, r + 1, r + 1, r, r, r + 1, op, r, r, r + 1))
    a("    v_max3_f32 v%d, v%d, v%d, v%d" % (T, T, S2, S2 + 1))
    allred("v_max_f32", T)
    a("    v_mul_f32 v%d, %s, v%d" % (T, sC, T))
    for i in range(10): a("    v_fma_f32 v%d, v%d, %s, -v%d" % (S0 + i, S0 + i, sC, T))
    for i in range(10): a("    v_exp_f32 v%d, v%d" % (S0 + i, S0 + i))
    for i in range(4): a(cvt(PX + i, S0 + 2 * i))
    a(cvt(PY, S2)); a(cvt(PY + 1, S2))
    a("    s_waitcnt vmcnt(2)")
    sums = ["    v_add_f32 v%d, v%d, v%d" % (T, S0, S0 + 1)] + ["    v_add_f32 v%d, v%d, v%d" % (T, T, S0 + i) for i in range(2, 10)]
    for j in range(8):
        a(m32(OT + 4 * j, vr(VX + 4 * j), vr(PX), "0"))
        a(sums[j])
    a(sums[8])
    for j in range(8):
        a("    v_mfma_f32_16x16x16_bf16 %s, %s, %s, %s" % (vr(OT + 4 * j), vr(VMr + 2 * j, 2), vr(PY, 2), vr(OT + 4 * j)))
    allred("v_add_f32", T)
    a("    v_rcp_f32 v%d, v%d" % (T, T))
    a("""    s_add_u32 s30, %s, 1
    s_cmp_ge_u32 s30, %s
    s_cbranch_scc1 L_ANP
    s_add_u32 %s, %s, 0x%x
    s_add_u32 %s, %s, 0x%x""" % (sI, sN, sQ, sQ, 6 * 32 * 8192, sK, sK, 6 * 32 * 16384))
    prefetch()
    a("L_ANP:")
    for j in range(16): a("    v_pk_mul_f32 %s, %s, %s op_sel_hi:[1,0]" % (vr(OT + 2 * j, 2), vr(OT + 2 * j, 2), vr(T, 2)))
    for j in range(16): a(cvt(OB + j, OT + 2 * j))
    a("    s_mov_b32 s30, %s\n    s_barrier" % sPAw)
    def epi(p):
        w_ = WA + 8 * (p & 3); d = PK + 4 * (p & 3)
        return [cvt(d + i, w_ + 2 * i) for i in range(4)] + ["    buffer_store_dwordx4 %s, v%d, s[4:7], s30 offen %s" % (vr(d), VL16, {0: "", 1: "sc1", 2: "nt", 3: "sc0 sc1"}[opt.get("pas", 0)]), "    s_add_u32 s30, s30, 0x10000"]
    for p in range(8):
        e = epi(p - 1) if p else []
        n = 0
        for k in range(4):
            for t in range(2):
                d = WA + 8 * (p & 3) + 4 * t
                a(m32(d, ar(16 * (2 * p + t) + 4 * k), vr(OB + 4 * k), vr(d) if k else "0"))
                n += 1
                if n >= 3 and e: a(e.pop(0))
    a("\n".join(epi(7)))
    a("""    s_add_u32 %s, %s, 1
    v_mov_b32 v%d, %s
    v_lshrrev_b32 v%d, 2, v%d
    v_and_b32 v%d, 0x7c, v%d
    s_waitcnt vmcnt(0)
    s_mov_b64 exec, 1
    buffer_store_dword v%d, off, s[4:7], %s
    s_mov_b64 exec, -1
L_AF:
    buffer_load_dword v%d, v%d, s[4:7], %s offen sc1
    s_waitcnt vmcnt(0)
    v_cmp_gt_u32 vcc, %s, v%d
    s_cbranch_vccnz L_AFR
    s_mov_b32 s30, %s""" % (sI, sI, T, sI, VFL, VL16, VFL, VFL, T, sFAw, T + 1, VFL, sFAr, sI, T + 1, sPAr))
    for i in range(8):
        a(ld4(OT + 4 * i, "s30", 0, VR))
        if i < 7: a("    s_add_u32 s30, s30, 4096")
    a("""    v_lshlrev_b32 v%d, 16, v%d
    v_and_b32 v%d, 0xffff0000, v%d
    v_lshlrev_b32 v%d, 16, v%d
    v_and_b32 v%d, 0xffff0000, v%d
    v_lshlrev_b32 v%d, 16, v%d
    v_and_b32 v%d, 0xffff0000, v%d
    v_lshlrev_b32 v%d, 16, v%d
    v_and_b32 v%d, 0xffff0000, v%d""" % (PK, XG, PK + 1, XG, PK + 2, XG + 1, PK + 3, XG + 1, PK + 4, XG + 2, PK + 5, XG + 2, PK + 6, XG + 3, PK + 7, XG + 3))
    for i in range(8):
        a("    s_waitcnt vmcnt(%d)" % (7 - i))
        a(m32(S0, vr(SELA), vr(OT + 4 * i), vr(S0) if i else "0"))
    def unpack(d, s0):
        a("    v_lshlrev_b32 v%d, 16, v%d\n    v_and_b32 v%d, 0xffff0000, v%d" % (d, s0, d + 1, s0))
    a(cvt(T, S0)); a(cvt(T + 1, S0 + 2))
    if opt.get("dbg_s"):
        a("    s_mov_b32 exec_hi, 0\n    s_add_u32 s30, %s, 0x%x\n    buffer_store_dwordx2 %s, v%d, s[4:7], s30 offen\n    s_mov_b32 exec_hi, -1" % (sO, 90 * MB, vr(T, 2), VO))
    unpack(S0, T); unpack(S0 + 2, T + 1)
    for i in range(4): a("    v_mul_f32 v%d, v%d, v%d" % (S0 + i, S0 + i, PK + 4 + i))
    a(cvt(T, S0)); a(cvt(T + 1, S0 + 2))
    unpack(S0, T); unpack(S0 + 2, T + 1)
    for i in range(4): a("    v_add_f32 v%d, v%d, v%d" % (S0 + i, S0 + i, PK + i))
    a(cvt(T, S0)); a(cvt(T + 1, S0 + 2))
    a("""    s_mov_b32 exec_hi, 0
    buffer_store_dwordx2 %s, v%d, %s, %s offen OUTF
    s_mov_b32 exec_hi, -1
    s_add_u32 %s, %s, 6
    s_add_u32 %s, %s, 0x%x
    s_add_u32 %s, %s, 0x%x
    s_xor_b32 %s, %s, 0x100000
    s_xor_b32 %s, %s, 0x100000
    s_cmp_lt_u32 %s, %s
    s_cbranch_scc1 L_AU
    s_branch L_AEND""".replace("OUTF", "sc1" if opt.get("outs") else "") % (vr(T, 2), VO, S_OUT, sO, sSeg, sSeg, sKMo, sKMo, 6 * 32 * 8192, sO, sO, 6 * 32768, sPAw, sPAw, sPAr, sPAr, sI, sN))
    a("L_AMR:\n    s_sleep 2"); spin(a, "L_AM")
    a("L_AFR:"); spin(a, "L_AF")
    a("L_AEND:")
    if opt.get("hdbg"):
        a("    s_waitcnt vmcnt(0)\n    s_cmp_lg_u32 s20, 0\n    s_cbranch_scc1 L_AEND2"); hstamp(a, 15); a("L_AEND2:")
    if opt.get("time"):
        a("""    s_waitcnt vmcnt(0)
    s_memrealtime s[98:99]
    s_waitcnt lgkmcnt(0)
    v_mov_b32 v0, s96
    v_mov_b32 v1, s98
    s_lshl_b32 s30, %s, 5
    s_add_u32 s30, s30, s21
    s_lshl_b32 s30, s30, 4
    s_add_u32 s30, s30, 0x%x
    s_mov_b64 exec, 1
    buffer_store_dwordx2 v[0:1], off, s[4:7], s30""" % (sX, TS + 16384))
```

```python
from common import *

def A(t): return 4 * t
Q0, Q1, K0, K1, V0, V1 = 32, 36, 40, 44, 48, 52
KX = 56; T4 = 64; SELQ = 68; IDX = 70; VL16 = 71; VQ = 72; SELK = 76; VO = 78; VPF = 79
SB = 80; V1W = 144; WOP = 208
def wq0(t): return ("v", SB + 8 * t)
def wq1(t): return ("a", 8 * t)
def wk0(t): return ("a", 64 + 8 * t)
def wk1(t): return ("a", 128 + 8 * t)
def wv0(t): return ("a", 192 + 8 * t)
def wv1(t): return ("v", V1W + 8 * t)
WT = [[wq0, wq1], [wk0, wk1], [wv0, wv1]]
def wo(T, t2):
    if t2 == 0: return ("v", SB + 8 * T)
    if T < 6: return ("v", WOP + 8 * T)
    return ("v", 32 + 8 * (T - 6))
IMG = 0; SP = 8192; RES = 16384
sS = "s22"; sM = "s25"; sPw = "s26"; sPr = "s27"; sKV = "s28"; sKM = "s29"; sT0 = "s30"; sT1 = "s31"
sR = "s32"; sCnt = "s33"; sMo = "s34"; sC = "s35"
mHI = "s[66:67]"
mLO = "s[68:69]"
mR = ["s[70:71]", "s[72:73]", "s[74:75]", "s[76:77]"]
sTagP = "s78"; sTagM = "s34"; sMa = "s79"; sFM = "s80"; sFK = "s81"; sT2 = "s82"; sT3 = "s83"
sTS = "s[84:85]"; sTE = "s[86:87]"

def smf(d, a_, b): return "    v_smfmac_f32_16x16x64_bf16 %s, %s, %s, v%d" % (vr(d), vr(a_), rr(b), IDX)

def res_addr(f, half):
    off = RES + f * 8192 + half * 1024
    return off >> 16, off & 0xffff

def loader(a, w, opt):
    vD0, vD1, vT0, vT1, vX0, vX1, vE0, vTo, vtmp, vtmp2 = 64, 65, 66, 67, 68, 69, 70, 72, 73, 74
    l = 0
    VM = 75
    a("""    v_lshlrev_b32 v%d, 4, v0
    v_lshlrev_b32 v%d, 2, v0
    v_lshrrev_b32 v1, 4, v0
    v_lshlrev_b32 v1, 1, v1
    v_bfe_u32 v2, v0, 2, 1
    v_add_u32 v1, v1, v2                        ; row i
    v_lshlrev_b32 v1, 10, v1
    v_bfe_u32 v2, v0, 3, 1                      ; half
    v_lshl_add_u32 v1, v2, 2, v1
    v_and_b32 v2, 3, v0
    v_lshl_add_u32 v1, v2, 3, v1
    s_lshl_b32 s30, s21, 5
    buffer_load_dword v5, v1, s[16:19], s30 offen
    v_mov_b32 v8, -1
    v_mov_b32 v9, -1
    v_mov_b32 v10, -1
    v_mov_b32 v11, -1
    s_lshl_b32 s30, s21, 13
    s_add_u32 s30, s30, 0x%x
    s_add_u32 s31, s30, 0x40000
    buffer_store_dwordx4 v[8:11], v%d, s[4:7], s30 offen
    buffer_store_dwordx4 v[8:11], v%d, s[4:7], s30 offen offset:1024
    buffer_store_dwordx4 v[8:11], v%d, s[4:7], s31 offen
    buffer_store_dwordx4 v[8:11], v%d, s[4:7], s31 offen offset:1024""" % (VL16, VM, PR + w * 2048, VL16, VL16, VL16, VL16))
    if w > 0:
        a("""    s_lshl_b32 s30, s21, 8
    s_add_u32 s30, s30, 0x%x
    buffer_store_dword v8, v%d, s[4:7], s30 offen""" % (MR + w * 8192, VM))
    else:
        a("""    v_mov_b32 v12, 0
    v_mov_b32 v13, 0
    v_lshlrev_b32 v14, 3, v0
    v_lshlrev_b32 v15, 7, v0
    s_lshl_b32 s30, s21, 10
    s_add_u32 s30, s30, 0x%x
    s_lshl_b32 s31, s21, 2
    s_add_u32 s31, s31, 0x%x""" % (FL, FL_A))
        if opt.get("keep_kv_flags"): a("    s_mov_b32 exec_lo, 0x0000ffff\n    s_mov_b32 exec_hi, 0x0000ffff")
        else: a("    s_mov_b32 exec_hi, 0x0000ffff")
        a("""    buffer_store_dwordx2 v[12:13], v14, s[4:7], s30 offen sc1
    s_mov_b32 exec_lo, -1
    s_mov_b32 exec_hi, 0
    buffer_store_dword v12, v15, s[4:7], s31 offen sc1
    s_mov_b64 exec, -1""")
    a("""    v_lshrrev_b32 v1, 4, v0                     ; r4
    v_add_u32 v2, %d, v1
    v_lshlrev_b32 v2, 13, v2                    ; (16w+r4)*8192
    v_lshlrev_b32 v1, 5, v1
    v_and_b32 v3, 15, v0
    v_lshlrev_b32 v3, 4, v3
    v_xor_b32 v3, v3, v1
    v_add_u32 v%d, v2, v3
    v_xor_b32 v%d, 128, v%d
    v_xor_b32 v%d, %d, v%d""" % (16 * w, vD0, vD1, vD0, vE0, (w & 1) << 7, VL16))
    a("""    v_lshrrev_b32 v2, 4, v0                     ; gb
    v_bfe_u32 v3, v0, 2, 2                      ; r
    v_lshl_add_u32 v1, v2, 3, v3                ; row
    v_and_b32 v2, 1, v2
    v_lshl_or_b32 v2, v2, 2, v3                 ; f
    v_xor_b32 v2, %d, v2
    v_lshlrev_b32 v2, 5, v2
    v_lshl_add_u32 v1, v1, 8, v2
    v_and_b32 v3, 3, v0
    v_lshl_add_u32 v%d, v3, 3, v1
    v_xor_b32 v%d, 32, v%d
    v_lshrrev_b32 v1, 2, v0                     ; 4gb+r
    v_and_b32 v2, 7, v1
    v_or_b32 v2, %d, v2
    v_lshlrev_b32 v2, 5, v2
    v_lshl_add_u32 v1, v1, 10, v2
    v_lshl_add_u32 v%d, v3, 3, v1""" % (2 * w, vT0, vT1, vT0, 8 * w, vTo))
    ptr = [P_WQ, P_WK, P_WV, P_WO]
    state = {"m": 0}
    def dma(c):
        slot = (c % 10) * 16384
        m = c >> 3
        if m != state["m"]:
            a("    s_mov_b32 s8, s%d\n    s_mov_b32 s9, s%d" % (ptr[m], ptr[m] + 1))
            state["m"] = m
        for i in range(4):
            if m < 3:
                ks = c & 7
                a("    s_mov_b32 m0, 0x%x" % (slot + w * 4096 + i * 1024))
                a("    s_add_u32 s31, s83, 0x%x" % (ks * 64 * 8192 + i * 32768))
                a("    buffer_load_dwordx4 v%d, s[8:11], s31 offen lds" % (vD1 if i & 2 else vD0))
            else:
                t2, hi, q = (c >> 2) & 1, (c >> 1) & 1, c & 1
                e = 64 * t2 + 8 * hi + 2 * q + 32 * (w & 1) + 4 * (w >> 1) + 16 * (i >> 1) + (i & 1)
                a("    s_mov_b32 m0, 0x%x" % (slot + w * 4096 + i * 1024))
                a("    s_add_u32 s31, s82, 0x%x" % (e * 1024))
                a("    v_xor_b32 v%d, %d, v%d" % (vtmp, i << 5, vE0))
                a("    buffer_load_dwordx4 v%d, s[8:11], s31 offen lds" % vtmp)
    a("    s_lshl_b32 s83, s21, 8\n    s_lshl_b32 s82, s21, 17")
    PD = opt.get("pd", 0); P0 = opt.get("p0", 9)
    vPf, vPd = 76, 77
    a("    v_lshlrev_b32 v%d, 7, v0\n    s_lshl_b32 s35, s21, 14\n    s_add_u32 s35, s35, %d" % (vPf, (w & 1) * 8192))
    srd_pf = {"m": -1}
    def pf(c):
        if c >= 24 or not PD or (c & 1) != (w >> 1): return 0
        m = c >> 3
        if m != srd_pf["m"]:
            srd(a, S_AUX, ptr[m], 4 * MB); srd_pf["m"] = m
        a("    s_add_u32 s31, s35, 0x%x\n    buffer_load_dword v%d, v%d, s[16:19], s31 offen" % ((c & 7) * 64 * 8192, vPd, vPf))
        return 1
    npf = 0
    for c in range(P0, 9): npf += pf(c)
    for c in range(9): dma(c)
    for c in range(9, 9 + PD): npf += pf(c)
    a("    s_waitcnt vmcnt(%d)" % (36 + npf))
    a("""    s_nop 0
    v_and_b32 v6, 12, v75
    v_cmp_eq_u32 vcc, 0, v6
    v_cndmask_b32 v6, -1, -2, vcc
    v_and_b32 v5, v5, v6
    s_lshl_b32 s30, s21, 8
    s_add_u32 s30, s30, 0x%x""" % MR)
    if w == 0: a("    buffer_store_dword v5, v%d, s[4:7], s30 offen" % VM)
    if w == 0 and opt.get("dbg_mem"):
        a("    s_add_u32 s30, s30, 0x%x\n    buffer_store_dword v5, v%d, s[4:7], s30 offen" % (MD - MR, VM))
    a("    s_barrier")
    def signal(off):
        a("""    s_mov_b64 exec, 1
    v_mov_b32 v%d, 1
    buffer_atomic_add v%d, off, s[12:15], 0 offset:%d sc1
    s_mov_b64 exec, -1""" % (vtmp2, vtmp2, off))
    if w == 0: signal(DBG_INIT)
    for c in range(32):
        slot = (c % 10) * 16384
        a("    s_waitcnt vmcnt(%d) lgkmcnt(0)" % (4 * (min(c + 8, 31) - c)))
        a("    s_barrier")
        if opt.get("wts") and c in (0, 8, 16, 24): a("    s_memrealtime s[%d:%d]" % (66 + c // 4, 67 + c // 4))
        if opt.get("wts") and c == 28: a("    v_mov_b32 v76, s66\n    v_mov_b32 v77, s68\n    v_mov_b32 v78, s70\n    v_mov_b32 v79, s72\n    s_lshl_b32 s30, s21, 6\n    s_add_u32 s30, s30, 0x%x\n    v_subrev_u32 v76, s96, v76\n    v_subrev_u32 v77, s96, v77\n    v_subrev_u32 v78, s96, v78\n    v_subrev_u32 v79, s96, v79\n    buffer_store_dwordx4 v[76:79], off, s[4:7], s30" % (TS + 20480 + 16 * w))
        if c + 9 <= 31: dma(c + 9)
        pf(c + 9 + PD)
        if c == 12 and w == 0: signal(DBG_READY)
        if c == 28:
            a("    v_add_u32 v%d, 0x10000, v%d" % (vX1, VQ))
            for T in range(8):
                for half in range(2):
                    sel, imm = res_addr(2 + T, half)
                    a("    ds_write_b128 v%d, %s offset:%d" % (vX1 if sel else VQ, vr(8 * T + 4 * half), imm))
        if c < 24:
            m, ks = c >> 3, c & 7
            t = (ks - 2 * w) & 7
            a("    v_add_u32 v%d, 0x%x, v%d\n    v_add_u32 v%d, 0x%x, v%d" % (vX0, slot, vT0, vX1, slot, vT1))
            for tt in range(2):
                for hi in range(2):
                    for q in range(2):
                        a("    ds_read_b64_tr_b16 %s, v%d offset:%d" % (rr(WT[m][tt](t), 4 * hi + 2 * q, 2), vX1 if tt else vX0, (32 * hi + 4 * q) * 256))
            if c == 23:
                a("    v_mov_b32 v%d, v%d\n    v_add_u32 v%d, %d, v%d" % (vD0, vTo, VQ, w * 2048, VL16))
        else:
            t2, hi, q = (c >> 2) & 1, (c >> 1) & 1, c & 1
            a("    v_add_u32 v%d, 0x%x, v%d" % (vX0, slot, vD0))
            for T in range(8):
                dst = ("v", 8 * T) if t2 == 0 else wo(T, 1)
                tmp = vtmp if T & 1 else vtmp2
                a("    v_xor_b32 v%d, %d, v%d" % (tmp, T << 5, vX0))
                a("    ds_read_b64_tr_b16 %s, v%d" % (rr(dst, 4 * hi + 2 * q, 2), tmp))
    a("    s_waitcnt lgkmcnt(0)\n    s_barrier")
    a("    v_add_u32 v%d, 0x10000, v%d\n    v_add_u32 v%d, 0x20000, v%d" % (vX0, VQ, vX1, VQ))
    for t in range(8):
        for half in range(2):
            sel, imm = res_addr(10 + t, half)
            a("    ds_write_b128 v%d, %s offset:%d" % ([VQ, vX0, vX1][sel], vr(SB + 8 * t + 4 * half), imm))
    for T in (6, 7):
        for half in range(2):
            sel, imm = res_addr(T - 6, half)
            a("    ds_write_b128 v%d, %s offset:%d" % (VQ, vr(wo(T, 1)[1] + 4 * half), imm))
    for tau in (1, 2, 3):
        a("    v_add_u32 v%d, %d, v%d" % (VQ + tau, ((w + tau) & 3) * 2048, VL16))

def merge(main, side):
    out = []
    for i, m in enumerate(main):
        out.append(m)
        out.extend(side.get(i, []))
    return "\n".join(out)

def chain(a, opt):
    stamps = opt.get("stamps", [])
    trace = opt.get("trace")
    def stamp(name):
        a("; MARK " + name)
        if trace and name in trace:
            i = trace.index(name)
            r0, r1 = (30, 31) if name in ("h2", "wo", "h1") else (14, 15)
            a('''    s_memtime s[90:91]
    s_lshl_b32 s92, %s, 4
    s_lshl_b32 s93, s20, 11
    s_add_u32 s92, s92, s93
    v_mov_b32 v%d, s92
    s_waitcnt lgkmcnt(0)
    v_mov_b32 v%d, s90
    ds_write_b32 v%d, v%d offset:%d''' % (sS, r0, r1, r0, r1, SP + 1024 + 4 + 4 * i))
        if name in stamps:
            i = stamps.index(name)
            a('''    s_memtime s[90:91]
    s_waitcnt lgkmcnt(0)
    s_sub_u32 s92, s90, s93
    s_mov_b32 s93, s90
    s_add_u32 s%d, s%d, s92''' % (94 + i, 94 + i))
    for w in range(4):
        if w < 3: a("    s_cmp_lg_u32 s20, %d\n    s_cbranch_scc1 L_CLD%d" % (w, w + 1))
        loader(a, w, opt)
        if w < 3: a("    s_branch L_CLDONE\nL_CLD%d:" % (w + 1))
    a("L_CLDONE:")
    a("""    v_lshrrev_b32 v0, 4, v%d                    ; lane
    v_and_b32 v1, 8, v0
    v_cmp_ne_u32 %s, 0, v1
    v_and_b32 v1, 2, v0
    v_cmp_ne_u32 vcc, 0, v1
    v_mov_b32 v2, 0x4444
    v_mov_b32 v3, 0xeeee
    v_cndmask_b32 v%d, v2, v3, vcc
    v_and_b32 v1, 11, v0""" % (VL16, mHI, IDX))
    for r in range(4): a("    v_cmp_eq_u32 %s, %d, v1" % (mR[r], 8 * (r >> 1) + (r & 1)))
    a("""    v_and_b32 v3, 1, v0
    v_lshlrev_b32 v3, 4, v3
    v_mov_b32 v4, 0x3f80
    v_lshlrev_b32 v4, v3, v4                    ; 1.0 in slot n&1
    v_lshrrev_b32 v5, 4, v0                     ; g
    v_bfe_u32 v1, v0, 1, 2
    v_cmp_eq_u32 vcc, v1, v5
    v_cndmask_b32 v%d, 0, v4, vcc
    v_cndmask_b32 v%d, 0, v4, vcc
    v_bfe_u32 v1, v0, 2, 2
    v_cmp_eq_u32 vcc, v1, v5
    v_cndmask_b32 v%d, 0, v4, vcc
    v_cndmask_b32 v%d, 0, v4, vcc""" % (SELQ, SELQ + 1, SELK, SELK + 1))
    a("""    v_and_b32 v1, 0x31, v0
    v_bfe_u32 v2, v0, 1, 2
    v_lshl_or_b32 v1, v2, 2, v1
    v_bfe_u32 v2, v0, 3, 1
    v_lshl_or_b32 v1, v2, 1, v1
    v_lshlrev_b32 v1, 4, v1
    s_lshr_b32 s30, s20, 1
    s_lshl_b32 s30, s30, 10
    s_and_b32 s31, s20, 1
    s_lshl_b32 s31, s31, 3
    s_add_u32 s30, s30, s31
    v_add_u32 v%d, s30, v1""" % VO)
    a("""    s_mov_b32 %s, 0x%x""" % (sC, 0x3e0293ee))
    a("""    s_lshl_b32 s30, s21, 14
    s_lshl_b32 s31, s20, 12
    s_add_u32 %s, s30, s31
    s_add_u32 %s, %s, 0x%x
    s_lshr_b32 s30, s30, 1
    s_lshr_b32 s31, s31, 1
    s_add_u32 %s, s30, s31
    s_add_u32 %s, %s, 0x%x
    s_add_u32 %s, s30, s31
    s_add_u32 %s, %s, 0x%x
    s_add_u32 %s, s31, 0x%x
    s_lshl_b32 s30, s21, 10
    s_lshl_b32 s31, s20, 2
    s_add_u32 s82, s30, s31
    s_add_u32 %s, s82, 0x%x
    s_lshl_b32 s30, s21, 6
    s_lshl_b32 s31, s20, 16
    s_add_u32 %s, s30, s31
    s_add_u32 %s, %s, 0x%x
    s_add_u32 %s, s82, 0x%x
    s_lshl_b32 s30, s21, 8
    s_lshl_b32 s31, s20, 6
    s_add_u32 s30, s30, s31
    s_add_u32 %s, s30, 0x%x
    s_mov_b32 s68, 0x000f000f
    s_mov_b32 s69, 0x000f000f
    s_mov_b32 s78, 0
    s_mov_b32 s34, 0
    s_mov_b32 %s, 0""" % (sKV, sKV, sKV, KV, sKM, sKM, sKM, KM, sPr, sPr, sPr, PR, sM, MR, sFK, FL_KV, sPw, sPw, sPw, PR,
                          sFM, FL_M, sMa, MR, sS))
    if opt.get("time"): a("    s_memrealtime s[94:95]")
    a("""L_CRDY:
    buffer_load_dword v1, off, s[12:15], 0 offset:%d sc1
    buffer_load_dword v2, off, s[4:7], %s sc1
    s_waitcnt vmcnt(0)
    v_readfirstlane_b32 s30, v1
    v_readfirstlane_b32 s31, v2
    s_cmp_lt_u32 s30, 32
    s_cbranch_scc1 L_CRDY_R
    s_cmp_ge_u32 s31, 1
    s_cbranch_scc1 L_CGO
L_CRDY_R:""" % (DBG_READY, sFK))
    spin(a, "L_CRDY")
    a("L_CGO:")
    a("""    s_mov_b32 %s, 1
    s_mov_b32 %s, 1
    buffer_load_dword v%d, off, s[4:7], %s offset:16 sc1""" % (sR, sCnt, VPF, sFK))
    for r in range(Q0, V1 + 4, 2): a("    v_mov_b64 v[%d:%d], 0" % (r, r + 1))
    a("    s_waitcnt lgkmcnt(0)")
    if opt.get("time"): a("    s_memtime %s\n    s_memrealtime s[88:89]" % sTS)
    if opt.get("hdbg"): a("    s_memrealtime s[88:89]")
    if stamps or opt.get("cnt"):
        a("    s_waitcnt lgkmcnt(0)\n    s_mov_b32 s93, s84")
        for i in range(8): a("    s_mov_b32 s%d, 0" % (94 + i))
    cvt = lambda d, s0, s1=None: "    v_cvt_pk_bf16_f32 v%d, v%d, v%d" % (d, s0, s0 + 1 if s1 is None else s1)
    tm = lambda d, s0, sel: "    v_mfma_f32_16x16x16_bf16 %s, %s, %s, 0" % (vr(d), vr(s0, 2), vr(sel, 2))
    cnd = lambda d, s0, s1: "    v_cndmask_b32 v%d, v%d, v%d, %s" % (d, s0, s1, mHI)
    def delay(n):
        while n > 0:
            a("    s_nop %d" % (min(n, 16) - 1)); n -= 16
    ld4 = lambda r, so, off=0: "    buffer_load_dwordx4 %s, v%d, s[4:7], %s offen offset:%d sc1" % (vr(r), VL16, so, off)
    ldM = ld4(A(0), sM) + "\n" + ld4(A(1), sM, 1024)
    PB = 24
    ldP = ld4(PB, sPr) + "\n" + ld4(PB + 4, sPr, 1024)
    K1N = opt.get("k1", 2); K2N = opt.get("k2", 2)
    def check(n, tag, r=0):
        a("""    s_waitcnt vmcnt(%d)
    v_bitop3_b32 v%d, v%d, v%d, %s bitop3:0x7e
    v_and_b32 v%d, 1, v%d
    v_cmp_ne_u32 vcc, 0, v%d""" % (n, T4, r, r + 4, tag, T4, T4, T4))
    for i in range(K2N): a(ldM)
    a("L_STEP:")
    check(2 * (K2N - 1), sTagM)
    a("    s_cbranch_vccnz L_H2R")
    a("L_GOT:")
    stamp("h2")
    if opt.get("nocomp"):
        a("    s_barrier\n    s_cmp_eq_u32 %s, 63\n    s_cbranch_scc1 L_CFIN" % sS)
        delay(opt["nocomp"])
        a("""    v_and_b32 v59, 0x30, v71
    v_cmp_eq_u32 vcc, 0, v59
    v_bfe_u32 v58, v71, 2, 6
    v_and_b32 v56, 0x300, v71
    v_cndmask_b32 v59, -1, -2, vcc
    v_lshl_or_b32 v58, v56, 3, v58
    v_mov_b32 v64, s78
    s_mov_b32 s31, s26""")
        for T in range(8):
            a("    buffer_store_dword v64, v58, s[4:7], s31 offen\n    s_add_u32 s31, s31, 0x2000")
            if T < 7: delay(opt.get("gap", 8))
        a("    s_branch L_NOCOMP")
    own = [smf(Q0, A(0), wq0(0)), smf(Q1, A(0), wq1(0)), smf(K0, A(0), wk0(0)), smf(K1, A(0), wk1(0)),
           smf(Q0, A(1), wq0(1)), smf(Q1, A(1), wq1(1)), smf(K0, A(1), wk0(1)), smf(K1, A(1), wk1(1)),
           smf(V0, A(0), wv0(0)), smf(V1, A(0), wv1(0)), smf(V0, A(1), wv0(1)), smf(V1, A(1), wv1(1))]
    n0 = opt.get("n0", 7)
    dw = ["    ds_write_b128 v%d, %s offset:%d" % (VQ, vr(A(t)), IMG + 1024 * t) for t in range(2)]
    w0, w1 = opt.get("w0", 0), opt.get("w1", 2)
    sd = {}
    for pos, l in ((w0, dw[0]), (w1, dw[1])):
        if pos < 0: a(l)
        else: sd.setdefault(pos, []).append(l)
    a(merge(own[:n0], sd))
    a("    s_waitcnt lgkmcnt(0)\n    s_barrier")
    rdA = ["    ds_read_b128 %s, v%d offset:%d" % (vr(A(t)), VQ + (t >> 1), IMG + (t & 1) * 1024) for t in range(2, 8)]
    a(rdA[0]); a(rdA[1])
    nown = opt.get("nown", 12)
    sd = {0: rdA[2:3], 1: rdA[3:4], 2: rdA[4:5], 3: rdA[5:6]}
    nr = nown - n0
    if nr < 4:
        sd[nr - 1] = sum([sd.pop(i) for i in range(nr - 1, 4)], [])
    sd[0] = sd[0] + [ld4(KX, sKV)]
    a(merge(own[n0:nown], sd))
    stamp('a')
    VX = 0
    main = []
    for t in range(2, 8): main += [smf(Q0, A(t), wq0(t)), smf(Q1, A(t), wq1(t))]
    pf1 = """    s_cmp_ge_u32 %s, 63
    s_cbranch_scc1 L_NOPF
    s_cmp_lt_u32 %s, %s
    s_cbranch_scc1 L_KVW
L_KVOK:""" % (sS, sT2, sCnt)
    pf2 = ["""    s_add_u32 %s, %s, 1
    s_cmp_eq_u32 %s, %d
    s_cselect_b32 %s, 0, %s""" % (sR, sR, sR, NREP, sR, sR),
           """    s_addc_u32 %s, %s, 0
    s_lshl_b32 s31, %s, 4
    s_add_u32 s31, s31, %s""" % (sCnt, sCnt, sR, sFK),
           """    s_add_u32 s30, %s, 0x80000
    s_sub_u32 s31, s31, s30
    v_lshlrev_b32 v%d, 2, v%d""" % (sKV, VPF, VL16),
           "    v_writelane_b32 v%d, s31, 63" % VPF,
           ("    buffer_load_dword v%d, v%d, s[4:7], s30 offen sc1" % (VPF, VPF)) if not opt.get("no_pf") else "    v_mov_b32 v%d, 100" % VPF]
    w = lambda n: "    s_waitcnt lgkmcnt(%d)" % n
    a(w(5))
    side = {0: [ld4(KX + 4, sKV, 1024)], 1: [w(4), "    v_readlane_b32 %s, v%d, 63" % (sT2, VPF)], 2: [ld4(VX, sKV, 2048)], 3: [w(3)], 4: [ld4(VX + 4, sKV, 3072)], 5: [w(2)]}
    a(merge(main[:6], side))
    a(pf1)
    side = {0: [pf2[0]], 1: [pf2[1], w(1)], 2: [pf2[2]], 3: [pf2[3], w(0)], 4: [pf2[4]]}
    a(merge(main[6:], side))
    a("L_PFD:")
    stamp('b')
    VPF2 = KX + 7
    VR1 = T4 + 3
    st2a = []
    for T in range(8):
        for half in range(2):
            sel, imm = res_addr(2 + T, half)
            st2a.append("    ds_read_b128 %s, v%d offset:%d" % (vr(SB + 8 * T + 4 * half), VPF2 if sel else VQ, imm))
    main = []
    for t in range(2, 8): main += [smf(K0, A(t), wk0(t)), smf(K1, A(t), wk1(t))]
    nsl = (0 if opt.get("no_pf") else 1)
    tq0, tq1 = tm(T4, Q0, SELQ), tm(Q1, Q0 + 2, SELQ)
    sx0 = "    v_mfma_f32_16x16x32_bf16 %s, %s, %s, 0" % (vr(Q1), vr(KX), vr(Q0))
    sx1 = "    v_mfma_f32_16x16x32_bf16 %s, %s, %s, 0" % (vr(T4), vr(KX + 4), vr(Q0))
    r = st2a
    seq = [main[0], r[0], cvt(Q0, Q0),
           main[1], r[1], cvt(Q0 + 1, Q0 + 2),
           main[2], r[2], cvt(Q0 + 2, Q1),
           tq0, r[3], cvt(Q0 + 3, Q1 + 2),
           main[3], r[4],
           tq1, r[5],
           main[4], r[6], cvt(Q0, T4),
           main[5], r[7], cvt(Q0 + 1, T4 + 2),
           main[6], cvt(Q0 + 2, Q1),
           main[7], cvt(Q0 + 3, Q1 + 2),
           main[8], "    s_waitcnt vmcnt(%d)" % (2 + nsl),
           sx0, sx1, "    v_add_u32 v%d, 0x10000, v%d" % (VPF2, VQ),
           main[9], r[8],
           main[10], r[9], cnd(Q1, Q1, T4),
           main[11], r[10], cnd(Q1 + 1, Q1 + 1, T4 + 1)]
    a("\n".join(seq))
    stamp('c')
    vm = []
    for t in range(2, 8): vm += [smf(V0, A(t), wv0(t)), smf(V1, A(t), wv1(t))]
    vm = own[nown:] + vm
    vi = iter(vm)
    a(next(vi)); a(r[11])
    a(cvt(K0, K0)); a(cvt(K0 + 1, K0 + 2)); a(cnd(Q1 + 2, Q1 + 2, T4 + 2)); a(cvt(K0 + 2, K1)); a(cvt(K0 + 3, K1 + 2)); a(cnd(Q1 + 3, Q1 + 3, T4 + 3))
    a(tm(T4, K0, SELK)); a(r[12]); a(tm(K1, K0 + 2, SELK))
    if opt.get("x64"):
        a("    ds_write_b64 v%d, %s offset:%d" % (VQ, vr(Q1, 2), SP)); a(next(vi)); a("    ds_write_b64 v%d, %s offset:%d" % (VQ, vr(Q1 + 2, 2), SP + 8))
    else:
        a("    ds_write_b128 v%d, %s offset:%d" % (VQ, vr(Q1), SP))
        if opt.get("dv1", 0): a(next(vi))
    a(cvt(K0, T4)); a(cvt(K0 + 1, T4 + 2)); a(cvt(K0 + 2, K1)); a(cvt(K0 + 3, K1 + 2))
    a("    s_mov_b64 vcc, %s" % mHI)
    a(r[13])
    a("    v_mfma_f32_16x16x32_bf16 %s, %s, %s, 0" % (vr(K1), vr(K0), vr(Q0)))
    a(r[14])
    a(next(vi))
    a(r[15])
    a("    v_mov_b32 v%d, %s" % (KX, sS))
    a("    v_cndmask_b32 v%d, v%d, v%d, vcc" % (K1, K1, K1 + 1))
    a("    ds_write_b32 v%d, v%d offset:%d" % (VQ, K1, SP + 1024))
    nd = opt.get("nd", 5)
    for i in range(nd):
        a(next(vi))
        if i == 2 and not opt.get("no_km"):
            a("    buffer_store_dwordx4 %s, v%d, s[4:7], %s offen sc1" % (vr(K0), VL16, sKM)); nsl += 1
        if i == 0 and not opt.get("no_km"):
            a("    s_mov_b64 exec, 1\n    buffer_store_dword v%d, off, s[4:7], %s sc1\n    s_mov_b64 exec, -1" % (KX, sFM)); nsl += 1
        if i == 1: a("    s_not_b64 vcc, vcc")
    a("    s_waitcnt lgkmcnt(0)\n    s_barrier")
    stamp('d')
    XR = [Q0, K0, KX]; YR = [K1 + 1, T4, T4 + 1]
    for tau in (1, 2, 3):
        a("    ds_read_b128 %s, v%d offset:%d" % (vr(XR[tau - 1]), VQ + tau, SP))
        a("    ds_read_b32 v%d, v%d offset:%d" % (YR[tau - 1], VQ + tau, SP + 1024))
    for m_ in vi: a(m_)
    X = Q1; Y = K1
    pk = lambda d, s0, s1: "    v_pk_add_f32 %s, %s, %s" % (vr(d, 2), vr(s0, 2), vr(s1, 2))
    if not opt.get("pk"):
        for i in range(3):
            a(w(4 - 2 * i))
            for r in range(4): a("    v_add_f32 v%d, v%d, v%d" % (X + r, X + r, XR[i] + r))
            a("    v_add_f32 v%d, v%d, v%d" % (Y, Y, YR[i]))
    else:
        a(w(3)); a(pk(X, X, XR[0])); a(pk(X + 2, X + 2, XR[0] + 2)); a(pk(X, X, XR[1])); a(pk(X + 2, X + 2, XR[1] + 2))
        a(w(0)); a(pk(Y, Y, T4)); a(pk(X, X, XR[2])); a(pk(X + 2, X + 2, XR[2] + 2)); a("    v_add_f32 v%d, v%d, v%d" % (Y, Y, Y + 1))
    st2b = []
    for T in (6, 7):
        for half in range(2):
            sel, imm = res_addr(T - 6, half)
            st2b.append("    ds_read_b128 %s, v%d offset:%d" % (vr(wo(T, 1)[1] + 4 * half), VQ, imm))
    dpp = "row_ror:8 row_mask:0xf bank_mask:0xf"
    m0, m1, m2, m3 = T4, T4 + 1, T4 + 2, T4 + 3
    a("""    v_max3_f32 v%d, v%d, v%d, v%d
    v_max3_f32 v%d, v%d, v%d, v%d""" % (m0, X, X + 1, X + 2, m0, m0, X + 3, Y))
    a(cvt(V0, V0)); a(cvt(V0 + 1, V0 + 2))
    a("    v_max_f32_dpp v%d, v%d, v%d %s\n    v_max_f32_dpp v%d, v%d, v%d %s" % (m2, m0, m0, dpp, m3, m0, m0, dpp))
    a(cvt(V0 + 2, V1)); a(cvt(V0 + 3, V1 + 2))
    a("""    v_permlane16_swap_b32 v%d, v%d
    v_max_f32 v%d, v%d, v%d
    v_max_f32 v%d, v%d, v%d""" % (m2, m3, m0, m2, m3, m1, m2, m3))
    if not opt.get("no_km"):
        a("    buffer_store_dwordx4 %s, v%d, s[4:7], %s offen offset:1024 sc1" % (vr(V0), VL16, sKM)); nsl += 1
    a("    s_cmp_eq_u32 %s, 63\n    s_cbranch_scc1 L_CFIN" % sS)
    a("""    v_permlane32_swap_b32 v%d, v%d
    v_max_f32 v%d, v%d, v%d
    v_mul_f32 v%d, %s, v%d""" % (m0, m1, m0, m0, m1, m0, sC, m0))
    sc = [Y, X, X + 1, X + 2, X + 3]
    for r in sc: a("    v_fma_f32 v%d, v%d, %s, -v%d" % (r, r, sC, m0))
    for r in sc: a("    v_exp_f32 v%d, v%d" % (r, r))
    PX = Q0; PY = K1 + 2; pk0 = T4; ya, yb = T4 + 2, T4 + 3
    l0, l1, l2, l3 = 8, 9, 10, 11
    ZP = 12
    cd = lambda d, s0: "    v_cndmask_b32_dpp v%d, v%d, v%d, vcc %s" % (d, s0, s0, dpp)
    a(cvt(pk0, X)); a(cd(ya, Y)); a(cvt(pk0 + 1, X + 2)); a(cd(PX, pk0))
    a("    v_add_f32 v%d, v%d, v%d" % (l0, X, X + 1))
    a(cd(PX + 1, pk0 + 1))
    a("    s_not_b64 vcc, vcc")
    a(cd(PX + 2, pk0)); a(cd(PX + 3, pk0 + 1)); a(cd(yb, Y))
    stamp('sm')
    OT0 = K0; OT1 = KX
    a("    s_waitcnt vmcnt(%d)" % nsl)
    a("    v_mfma_f32_16x16x32_bf16 %s, %s, %s, 0" % (vr(OT0), vr(VX), vr(PX)))
    a("    v_add_f32 v%d, v%d, v%d\n    v_add_f32 v%d, v%d, v%d" % (l1, X + 2, X + 3, l0, l0, Y))
    a("    v_mfma_f32_16x16x32_bf16 %s, %s, %s, 0" % (vr(OT1), vr(VX + 4), vr(PX)))
    a("    v_add_f32 v%d, v%d, v%d" % (l0, l0, l1))
    a(cvt(PY, ya, yb)); a(cvt(PY + 1, ya, yb))
    a("""    v_add_f32_dpp v%d, v%d, v%d %s
    v_add_f32_dpp v%d, v%d, v%d %s""" % (l2, l0, l0, dpp, l3, l0, l0, dpp))
    a("    v_mfma_f32_16x16x16_bf16 %s, %s, %s, %s" % (vr(OT0), vr(V0, 2), vr(PY, 2), vr(OT0)))
    a("    v_mov_b64 %s, 0" % vr(ZP, 2))
    a("    v_permlane16_swap_b32 v%d, v%d" % (l2, l3))
    a("    v_mfma_f32_16x16x16_bf16 %s, %s, %s, %s" % (vr(OT1), vr(V0 + 2, 2), vr(PY, 2), vr(OT1)))
    a("""    v_add_f32 v%d, v%d, v%d
    v_add_f32 v%d, v%d, v%d""" % (l0, l2, l3, l1, l2, l3))
    zm = lambda d: "    v_mfma_f32_32x32x8_bf16 %s, %s, %s, 0" % (vr(d, 16), vr(ZP, 2), vr(ZP, 2))
    a(zm(16))
    a("    s_nop 0")
    a("""    v_permlane32_swap_b32 v%d, v%d
    v_add_f32 v%d, v%d, v%d
    v_rcp_f32 v%d, v%d""" % (l0, l1, l0, l0, l1, l0, l0))
    Z = X
    for r_ in range(4): a("    v_cndmask_b32 v%d, v%d, v%d, vcc" % (Z + r_, OT0 + r_, OT1 + r_))
    for r_ in range(4): a("    v_mul_f32 v%d, v%d, v%d" % (Z + r_, l0, Z + r_))
    a(cvt(KX, Z)); a(cvt(KX + 1, Z + 2))
    a("    ds_write_b64 v%d, %s offset:%d" % (VO, vr(KX, 2), IMG))
    WA = [16, 20, 24, 28, 0, 4, 8, 12]
    a("    v_mov_b64 %s, 0" % vr(T4, 2))
    a("    v_mfma_f32_32x32x8_bf16 %s, %s, %s, 0" % (vr(0, 16), vr(T4, 2), vr(T4, 2)))
    VP, VA, VT = KX + 2, KX + 3, KX + 4
    a("""    v_and_b32 v%d, 0x30, v%d
    v_cmp_eq_u32 vcc, 0, v%d
    v_mov_b32 v%d, %s
    v_bfe_u32 v%d, v%d, 2, 6""" % (VA, VL16, VA, VT, sTagP, VP, VL16))
    a("    s_waitcnt lgkmcnt(0)\n    s_barrier")
    stamp('pv')
    OA = V0
    for q in range(2): a("    ds_read_b128 %s, v%d offset:%d" % (vr(OA + 4 * q), VL16, IMG + q * 1024))
    a("\n".join(st2b))
    R1, R2 = KX, KX + 1
    a("""    v_cndmask_b32 v%d, 0, v%d, vcc
    v_cndmask_b32 v%d, -1, -2, vcc
    v_and_b32 v%d, 0x300, v%d
    v_lshl_or_b32 v%d, v%d, 3, v%d
    v_add_u32 v%d, 0x10000, v%d
    v_add_u32 v%d, 0x20000, v%d
    s_mov_b32 s31, %s""" % (VT, VT, VA, R1, VL16, VP, R1, VP, R1, VQ, R2, VQ, sPw))
    st1 = []
    for t in range(8):
        for half in range(2):
            sel, imm = res_addr(10 + t, half)
            st1.append("    ds_read_b128 %s, v%d offset:%d" % (vr(SB + 8 * t + 4 * half), [VQ, R1, R2][sel], imm))
    wm = [smf(WA[T], OA + 4 * t2, wo(T, t2)) for T in range(8) for t2 in range(2)]
    def epi(T, usepk):
        t = WA[T]
        ad = [pk(t, t, t + 2)] if usepk else ["    v_add_f32 v%d, v%d, v%d" % (t + e, t + e, t + 2 + e) for e in range(2)]
        return ad, [cvt(t + 2, t), "    v_and_or_b32 v%d, v%d, v%d, v%d" % (t + 2, t + 2, VA, VT),
                    "    buffer_store_dword v%d, v%d, s[4:7], s31 offen" % (t + 2, VP), "    s_add_u32 s31, s31, 0x2000"]
    side = {0: [w(4)]}
    for T in range(8):
        ad, rest = epi(T, T == 7)
        g0 = min(2 * T + 3, 15); g1 = min(2 * T + 4, 15)
        if T < 7:
            side.setdefault(g0, []).extend(ad); side.setdefault(g1, []).extend(rest)
        else:
            tail = ad + rest
    for i in range(16):
        g = min(i + 1, 15)
        side[g] = [st1[i]] + side.get(g, [])
    side[12] = side[12] + [w(12)]
    a(w(5))
    a(merge(wm, side))
    a("\n".join(tail[:-1]))
    a("L_NOCOMP:")
    stamp('wo')
    SR = 16; VM = 20; VT2 = 21
    sh = ["    v_and_b32 v22, 64, v%d" % VL16, "    v_lshrrev_b32 v22, 2, v22", "    v_xor_b32 v22, 16, v22"]
    sh += ["    v_cndmask_b32 v%d, 0, 1.0, %s" % (SR + r, mR[r]) for r in range(4)]
    sh += ["    v_lshrrev_b32 v%d, v22, v%d" % (SR + r, SR + r) for r in range(4)]
    sh += ["    v_lshrrev_b32 v22, 4, v%d" % VL16, "    v_and_b32 v22, 0x30, v22", "    v_bfe_u32 v%d, v%d, 4, 2" % (VM, VL16),
           "    v_lshl_or_b32 v%d, v%d, 2, v22" % (VM, VM), "    v_not_b32 v%d, v%d" % (VT2, VA), "    v_and_b32 v%d, %s, v%d" % (VT2, sTagM, VT2)]
    pre = ["    s_add_u32 s31, %s, 1" % sS, "    s_bfe_u32 %s, s31, 0x10001" % sTagM,
           "    s_xor_b32 %s, %s, 0x2000" % (sM, sM), "    s_xor_b32 %s, %s, 0x2000" % (sMa, sMa)]
    allsh = pre + sh
    p1 = opt.get("p1", 10); pm = opt.get("pm", 21)
    a("\n".join(allsh[:p1]))
    if p1 > len(allsh): delay(p1 - len(allsh))
    a(ldP)
    if pm >= 0:
        a("\n".join(allsh[p1:pm]))
        if pm > max(p1, len(allsh)): delay(pm - max(p1, len(allsh)))
        a(ldM)
    a("\n".join(allsh[max(p1, pm):]))
    check(2 if pm >= 0 else 0, sTagP, PB)
    a("    s_cbranch_vccnz L_H1R")
    a("L_H1OK:")
    a("    v_mfma_f32_16x16x32_bf16 %s, %s, %s, 0" % (vr(T4), vr(SR), vr(PB)))
    a("    v_mfma_f32_16x16x32_bf16 %s, %s, %s, %s" % (vr(T4), vr(SR), vr(PB + 4), vr(T4)))
    a("""    s_add_u32 %s, %s, 1
    s_add_u32 %s, %s, 0x80000
    s_add_u32 %s, %s, 0x40000
    s_xor_b32 %s, %s, 0x40000
    s_xor_b32 %s, %s, 0x40000
    s_bfe_u32 %s, %s, 0x10001
    v_mov_b64 v[8:9], 0""" % (sS, sS, sKV, sKV, sKM, sKM, sPr, sPr, sPw, sPw, sTagP, sS))
    if opt.get("fixkv"): a("    s_sub_u32 %s, %s, 0x80000" % (sKV, sKV))
    a("""    v_add_f32_dpp v%d, v%d, v%d row_ror:4 row_mask:0xf bank_mask:0xf
    v_add_f32_dpp v%d, v%d, v%d row_ror:4 row_mask:0xf bank_mask:0xf
    s_nop 0
    v_add_f32_dpp v%d, v%d, v%d row_ror:8 row_mask:0xf bank_mask:0xf
    v_add_f32_dpp v%d, v%d, v%d row_ror:8 row_mask:0xf bank_mask:0xf
    s_mov_b64 exec, s[68:69]
    v_cvt_pk_bf16_f32 v%d, v%d, v%d
    v_and_or_b32 v%d, v%d, v%d, v%d
    buffer_store_dword v%d, v%d, s[4:7], %s offen""" % (T4 + 2, T4, T4, T4 + 3, T4 + 1, T4 + 1, T4, T4 + 2, T4 + 2, T4 + 1, T4 + 3, T4 + 3,
                                                          T4 + 2, T4, T4 + 1, T4 + 2, T4 + 2, VA, VT2, T4 + 2, VM, sMa))
    nst = 1
    if opt.get("dbg_mem"):
        a("""    s_lshl_b32 s30, %s, 13
    s_and_b32 s31, %s, 0xffffdfff
    s_add_u32 s30, s30, s31
    s_add_u32 s30, s30, 0x%x
    buffer_store_dword v%d, v%d, s[4:7], s30 offen""" % (sS, sMa, MD - MR, T4 + 2, VM)); nst = 2
    a("    s_mov_b64 exec, -1")
    if trace: a("    s_sub_u32 %s, %s, 1" % (sS, sS))
    stamp("h1")
    if trace: a("    s_add_u32 %s, %s, 1" % (sS, sS))
    a("    v_mfma_f32_32x32x8_bf16 v[32:47], v[8:9], v[8:9], 0")
    if pm >= 0: check(nst, sTagM, 0)
    else: a("    s_mov_b64 vcc, -1")
    a("    v_mfma_f32_32x32x8_bf16 v[48:63], v[8:9], v[8:9], 0")
    if pm >= 0: a("    s_cbranch_vccz L_H2Z")
    for i in range(K2N):
        delay(opt.get("p2" + "abc"[i], (0, 16, 16)[i]))
        a("    s_mov_b64 exec, vcc"); a(ldM); a("    s_mov_b64 exec, -1")
    a("    s_waitcnt lgkmcnt(0)\n    s_branch L_STEP")
    a("L_H2Z:\n    s_waitcnt lgkmcnt(0)\n    s_branch L_GOT")
    a("L_H2R:\n    s_mov_b64 exec, vcc")
    a(ldM)
    a("    s_mov_b64 exec, -1")
    if opt.get("cnt"): a("    s_add_u32 s101, s101, 1")
    spin(a, "L_STEP")
    a("L_H1R:")
    for i in range(K1N - 1):
        a("    s_mov_b64 exec, vcc"); a(ldP); a("    s_mov_b64 exec, -1"); delay(opt.get("p1r", 16))
    a("L_H1L:\n    s_mov_b64 exec, vcc")
    a(ldP)
    a("    s_mov_b64 exec, -1")
    if opt.get("cnt"): a("    s_add_u32 s100, s100, 1")
    check(2 * (K1N - 1), sTagP, PB)
    a("    s_cbranch_vccz L_H1OK")
    spin(a, "L_H1L")
    a("L_NOPF:\n    s_waitcnt vmcnt(0) lgkmcnt(0)\n    s_branch L_PFD")
    a("""L_KVW:
    s_lshl_b32 s31, %s, 4
    s_add_u32 s31, s31, %s
    buffer_load_dword v%d, off, s[4:7], s31 sc1
    s_waitcnt vmcnt(0)
    v_readfirstlane_b32 %s, v%d
    s_cmp_ge_u32 %s, %s
    s_cbranch_scc1 L_KVOK""" % (sR, sFK, VPF, sT2, VPF, sT2, sCnt))
    spin(a, "L_KVW")
    a("""L_CFIN:
    s_waitcnt vmcnt(0)
    v_mov_b32 v0, 64
    s_mov_b64 exec, 1
    buffer_store_dword v0, off, s[4:7], %s sc1""" % sFM)
    if opt.get("time"):
        a("""    s_memtime %s
    s_memrealtime s[90:91]
    s_waitcnt lgkmcnt(0)
    s_sub_u32 s30, s86, s84
    s_sub_u32 s31, s90, s88
    v_mov_b32 v0, s30
    v_mov_b32 v1, %s
    v_mov_b32 v2, s88
    v_mov_b32 v3, s90
    s_lshl_b32 s30, s21, 6
    s_lshl_b32 s31, s20, 4
    s_add_u32 s30, s30, s31
    s_add_u32 s30, s30, 0x%x
    buffer_store_dwordx4 v[0:3], off, s[4:7], s30""" % (sTE, "s31" if opt.get("keep_kv_flags") else "s94", TS))
        if opt.get("wts"):
            a("    s_sub_u32 s31, s94, s96\n    v_mov_b32 v4, s31\n    s_getreg_b32 s31, hwreg(HW_REG_HW_ID)\n    v_mov_b32 v5, s31\n    buffer_store_dwordx2 v[4:5], off, s[4:7], s30 offset:2048")
        if stamps or opt.get("cnt"):
            for i in range(8): a("    v_mov_b32 v%d, s%d" % (4 + i, 94 + i))
            a("    s_lshl_b32 s30, s21, 7\n    s_lshl_b32 s31, s20, 5\n    s_add_u32 s30, s30, s31\n    s_add_u32 s30, s30, 0x%x" % (TS + 4096))
            a("    buffer_store_dwordx4 v[4:7], off, s[4:7], s30\n    buffer_store_dwordx4 v[8:11], off, s[4:7], s30 offset:16")
    if opt.get("hdbg"):
        hstamp(a, 13); hstamp(a, 12, "s88"); hstamp(a, 11, "s100", True)
    if trace:
        a("    s_mov_b64 exec, -1\n    ds_read_b128 v[0:3], v%d offset:%d\n    s_lshl_b32 s30, s21, 12\n    s_lshl_b32 s31, s20, 10\n    s_add_u32 s30, s30, s31\n    s_add_u32 s30, s30, 0x%x\n    s_waitcnt lgkmcnt(0)\n    buffer_store_dwordx4 v[0:3], v%d, s[4:7], s30 offen" % (VQ, SP + 1024, TS + 65536, VL16))
    a("    s_waitcnt vmcnt(0)\n    s_endpgm")
```

```python
from layout import *
KN = "recurrent_scan__memory_aug_recurrent_mem_tr__mixer_s_mlp__prompt_kernel"

def vr(b, n=4): return "v[%d:%d]" % (b, b + n - 1) if n > 1 else "v%d" % b
def ar(b, n=4): return "a[%d:%d]" % (b, b + n - 1) if n > 1 else "a%d" % b
def rr(x, off=0, n=8):
    k, b = x
    return "%s[%d:%d]" % (k, b + off, b + off + n - 1)

S_WS = "s[4:7]"; S_W = "s[8:11]"; S_DBG = "s[12:15]"; S_AUX = "s[16:19]"
sW = "s20"
sH = "s21"
sXCC = "s23"
sTMO = "s24"
P_X, P_MEM0, P_WQ, P_WK, P_WV, P_WO, P_SEG, P_BX, P_W1, P_W2, P_W3, P_W4, P_OUT, P_DBG, P_WSP = [36 + 2 * i for i in range(15)]
DBG_INIT = 32
DBG_READY = 36
DBG_ERR = 40

def srd(a, q, ptr, nbytes):
    b = int(q[2:q.index(":")])
    a("    s_mov_b32 s%d, s%d" % (b, ptr))
    a("    s_mov_b32 s%d, s%d" % (b + 1, ptr + 1))
    a("    s_mov_b32 s%d, 0x%x" % (b + 2, nbytes))
    a("    s_mov_b32 s%d, 0x00020000" % (b + 3))

def prologue(a, opt={}):
    a("""    s_cmp_ge_u32 s2, 256
    s_cbranch_scc1 L_END""")
    if opt.get("ipf"):
        a("""    s_getpc_b64 s[28:29]
    s_lshr_b32 s3, s2, 3
    s_and_b32 s3, s3, 7
    s_lshl_b32 s3, s3, 14
    v_lshlrev_b32 v3, 6, v0
    v_add_u32 v3, s3, v3
    v_min_u32 v3, L_END - L_PC, v3
    s_and_b32 s28, s28, 0xffffffc0
L_PC:
    global_load_dword v4, v3, s[28:29]""")
    a("""    s_load_dwordx16 s[36:51], s[0:1], 0
    s_load_dwordx8 s[52:59], s[0:1], 64
    s_load_dwordx4 s[60:63], s[0:1], 96
    s_load_dwordx2 s[64:65], s[0:1], 112
    s_getreg_b32 s23, hwreg(HW_REG_XCC_ID)
    v_lshrrev_b32 v1, 6, v0
    s_and_b32 s23, s23, 7
    v_readfirstlane_b32 s20, v1
    s_lshl_b32 s3, s23, 1
    s_lshr_b32 s3, 0x79e4, s3
    s_and_b32 s3, s3, 3
    s_lshl_b32 s3, s3, 6
    s_lshl_b32 s22, s23, 2
    s_add_u32 s3, s3, s22
    s_mov_b32 s24, 0x200000
    v_and_b32 v0, 63, v0
    s_waitcnt lgkmcnt(0)""")
    srd(a, S_WS, P_WSP, WS_BYTES)
    srd(a, S_DBG, P_DBG, 256)
    srd(a, S_W, P_WQ, 4 * MB)
    srd(a, S_AUX, P_MEM0, 8192)
    a("""    v_mov_b32 v2, 0
    s_cmp_lg_u32 s20, 0
    s_cbranch_scc1 L_TK1
    s_mov_b64 exec, 1
    v_mov_b32 v1, 1
    buffer_atomic_add v1, off, s[12:15], s3 sc0 sc1
    s_waitcnt vmcnt(0)
    ds_write_b32 v2, v1
    s_waitcnt lgkmcnt(0)
    s_mov_b64 exec, -1
L_TK1:
    s_barrier
    ds_read_b32 v1, v2
    s_waitcnt lgkmcnt(0)
    v_readfirstlane_b32 s21, v1
    s_barrier
    s_cmp_ge_u32 s21, 32
    s_cbranch_scc1 L_END""")

def epilogue(a):
    a("""L_ABORT:
    s_mov_b64 exec, 1
    v_mov_b32 v1, 1
    buffer_atomic_add v1, off, s[12:15], 0 offset:%d sc1
    s_waitcnt vmcnt(0)
L_END:
    s_endpgm""" % DBG_ERR)

def spin(a, retry_label):
    a("""    s_sub_u32 s24, s24, 1
    s_cbranch_scc1 L_ABORT
    s_branch %s""" % retry_label)

def wrap(body_text, launch="grid=(256,1,1) block=(256,1,1) lds=163840"):
    ref = open("recurrent_scan__memory_aug_recurrent_mem_tr__mixer_s_mlp__prompt.s.ref").read()
    head = ref[:ref.index("; @launch")]
    return (head + "; @launch " + launch + "\n" + '.amdgcn_target "amdgcn-amd-amdhsa--gfx950"\n.text\n.globl %s\n.p2align 8\n.type %s,@function\n%s:\n' % (KN, KN, KN)
            + body_text +
            '.section .rodata,"a"\n.p2align 6\n.amdhsa_kernel %s\n  .amdhsa_next_free_vgpr 512\n  .amdhsa_next_free_sgpr 102\n  .amdhsa_accum_offset 256\n'
            '  .amdhsa_group_segment_fixed_size 0\n  .amdhsa_kernarg_size 120\n  .amdhsa_user_sgpr_count 2\n  .amdhsa_user_sgpr_kernarg_segment_ptr 1\n'
            '  .amdhsa_system_sgpr_workgroup_id_x 1\n  .amdhsa_float_denorm_mode_32 3\n.end_amdhsa_kernel\n' % KN)
```

```python
from common import *
from lnorm import *
sU = "s25"; sGH = "s26"; sR = "s27"; sN = "s28"; sI = "s29"; sSeg = "s32"; sW4 = "s33"; sQo = "s34"; sKo = "s35"; sFo = "s66"; sXo = "s67"; sHB = "s68"; sMB = "s69"
TILES = [("a", 0), ("a", 64), ("a", 128), ("a", 192), ("v", 128), ("v", 192)]
XB0 = 131072
def gq(a, opt):
    VL16, vD0, vD1, vT0, vT1, vX0, vX1, vF, vLB, vFl, vIn = 112, 113, 114, 115, 116, 117, 118, 119, 120, 122, 124
    a("""    s_sub_u32 s30, s23, 2
    s_lshl_b32 s30, s30, 5
    s_add_u32 %s, s30, s21
    s_mul_i32 %s, %s, 43691
    s_lshr_b32 %s, %s, 18
    s_mul_i32 s30, %s, 6
    s_sub_u32 %s, %s, s30
    s_cmp_lt_u32 %s, 4
    s_cselect_b32 %s, 11, 10
    s_lshl_b32 %s, s20, 12
    s_lshl_b32 %s, %s, 8""" % (sU, sGH, sU, sGH, sGH, sGH, sR, sU, sR, sN, sW4, sHB, sGH))
    srd(a, S_AUX, P_X, 2 * MB)
    a("""    v_lshlrev_b32 v%d, 4, v0
    v_lshrrev_b32 v1, 4, v0
    v_and_b32 v2, 15, v0
    v_lshlrev_b32 v3, 4, v2
    v_lshl_add_u32 v3, v1, 10, v3
    s_lshl_b32 s30, %s, 15
    s_lshl_b32 s31, s20, 13
    s_add_u32 s30, s30, s31""" % (VL16, sR))
    for p in range(2):
        for i in range(4): a("    buffer_load_dwordx4 %s, v3, s[16:19], s30 offen offset:%d" % (vr(16 + 16 * p + 4 * i), 256 * i))
        if p == 0: a("    s_add_u32 s30, s30, 4096")
    a("""    s_add_u32 s30, %s, 12
    s_min_u32 s30, s30, 127
    s_lshl_b32 %s, s30, 14
    s_add_u32 s30, %s, %s""" % (sU, sXo, sXo, sW4))
    for i in range(4): a("    buffer_load_dwordx4 %s, v3, s[16:19], s30 offen offset:%d" % (vr(48 + 4 * i), 256 * i))
    a("""    v_lshrrev_b32 v4, 2, v2
    v_lshlrev_b32 v4, 10, v4
    v_and_b32 v5, 3, v0
    v_lshl_add_u32 v4, v5, 8, v4
    v_lshl_add_u32 v%d, v1, 4, v4
    s_lshl_b32 s30, s20, 4
    v_add_u32 v4, s30, v1
    v_lshlrev_b32 v4, 13, v4
    v_lshlrev_b32 v6, 5, v1
    v_lshlrev_b32 v7, 4, v2
    v_xor_b32 v6, v6, v7
    v_add_u32 v%d, v4, v6
    v_xor_b32 v%d, 128, v%d
    v_bfe_u32 v6, v0, 2, 2
    v_lshl_add_u32 v4, v1, 3, v6
    v_and_b32 v7, 1, v1
    v_lshl_or_b32 v7, v7, 2, v6
    s_lshl_b32 s30, s20, 1
    v_xor_b32 v7, s30, v7
    v_lshlrev_b32 v7, 5, v7
    v_lshl_add_u32 v4, v4, 8, v7
    v_lshl_add_u32 v%d, v5, 3, v4
    v_xor_b32 v%d, 32, v%d""" % (vLB, vD0, vD1, vD0, vT0, vT1, vT0))
    ptr = [P_WK, P_WV, P_WQ]; tsel = [2, 4, 0]
    def dma(c):
        m, ks = c >> 3, c & 7
        if ks == 0: a("    s_mov_b32 s8, s%d\n    s_mov_b32 s9, s%d" % (ptr[m], ptr[m] + 1))
        for i in range(4):
            a("    s_add_u32 m0, %s, 0x%x" % (sW4, (c % 8) * 16384 + i * 1024))
            a("    s_add_u32 s31, %s, 0x%x" % (sHB, ks * 64 * 8192 + i * 32768))
            a("    buffer_load_dwordx4 v%d, s[8:11], s31 offen lds" % (vD1 if i & 2 else vD0))
    npf = 0
    if opt.get("gpf"):
        a("""    s_lshl_b32 s30, %s, 2
    s_add_u32 s30, s30, s20
    s_lshr_b32 s31, s30, 3
    s_cmp_eq_u32 s31, 0
    s_cselect_b32 s8, s%d, s%d
    s_cselect_b32 s9, s%d, s%d
    s_cmp_eq_u32 s31, 2
    s_cselect_b32 s8, s%d, s8
    s_cselect_b32 s9, s%d, s9
    s_and_b32 s30, s30, 7
    s_lshl_b32 s30, s30, 19
    s_add_u32 s30, s30, %s
    v_lshrrev_b32 v4, 2, v0
    v_lshlrev_b32 v4, 13, v4
    v_lshl_add_u32 v4, v5, 6, v4""" % (sR, ptr[0], ptr[1], ptr[0] + 1, ptr[1] + 1, ptr[2], ptr[2] + 1, sHB))
        for j in range(4):
            a("    buffer_load_dword v%d, v4, s[8:11], s30 offen" % (8 + j))
            if j < 3: a("    s_add_u32 s30, s30, 0x20000")
        npf = 4
    for c in range(7): dma(c)
    a("    s_waitcnt vmcnt(%d)" % (28 + npf))
    a("""    s_lshr_b32 s30, s20, 1
    s_lshl_b32 s30, s30, 14
    s_and_b32 s31, s20, 1
    s_lshl_b32 s31, s31, 7
    s_add_u32 s30, s30, s31
    s_add_u32 s30, s30, 0x%x
    v_add_u32 v%d, s30, v%d""" % (XB0, vX0, vLB))
    for p in range(2):
        ln_rows(a, 16 + 16 * p, 64, 96)
        for i in range(4): a("    ds_write_b128 v%d, %s offset:%d" % (vX0, vr(16 + 16 * p + 4 * i), 64 * p + 4096 * i))
    a("    s_cmp_ge_u32 %s, 116\n    s_cbranch_scc1 L_GNOLN" % sU)
    ln_rows(a, 48, 64, 96)
    a("    s_lshl_b32 s30, s20, 6\n    s_add_u32 s30, s30, %s" % sXo)
    for i in range(4):
        a("    buffer_store_dwordx4 %s, v%d, s[4:7], s30 offen sc1" % (vr(48 + 4 * i), vLB))
        if i < 3: a("    s_add_u32 s30, s30, 4096")
    a("L_GNOLN:")
    if opt.get("gpf"):
        srd(a, S_AUX, P_WO, 4 * MB)
        a("""    s_lshl_b32 s30, %s, 15
    s_lshl_b32 s31, s20, 13
    s_add_u32 s30, s30, s31
    v_lshlrev_b32 v4, 6, v0
    buffer_load_dword v12, v4, s[16:19], s30 offen
    s_add_u32 s30, s30, 4096
    buffer_load_dword v13, v4, s[16:19], s30 offen""" % sU)
    for c in range(24):
        a("    s_waitcnt vmcnt(%d) lgkmcnt(0)\n    s_barrier" % (4 * (min(c + 6, 23) - c)))
        if c == 10: a("    buffer_load_dword v%d, off, s[12:15], 0 offset:%d sc1" % (vIn, DBG_INIT))
        if c + 7 <= 23: dma(c + 7)
        m, ks = c >> 3, c & 7
        slot = (c % 8) * 16384
        a("    v_add_u32 v%d, 0x%x, v%d\n    v_add_u32 v%d, 0x%x, v%d" % (vX0, slot, vT0, vX1, slot, vT1))
        for tt in range(2):
            for hi in range(2):
                for q in range(2):
                    a("    ds_read_b64_tr_b16 %s, v%d offset:%d" % (rr(TILES[tsel[m] + tt], 8 * ks + 4 * hi + 2 * q, 2), vX1 if tt else vX0, (32 * hi + 4 * q) * 256))
    a("    s_waitcnt lgkmcnt(0)\n    s_barrier")
    if opt.get("time"): a("    s_memrealtime s[94:95]\n    s_memtime s[92:93]")
    a("""L_GINI:
    v_readfirstlane_b32 s30, v%d
    s_cmp_ge_u32 s30, 32
    s_cbranch_scc1 L_GINI2
    buffer_load_dword v%d, off, s[12:15], 0 offset:%d sc1
    s_waitcnt vmcnt(0)""" % (vIn, vIn, DBG_INIT))
    spin(a, "L_GINI")
    a("""L_GINI2:
    s_cmp_ge_u32 %s, 116
    s_cbranch_scc1 L_GNOF
    s_cmp_lg_u32 s20, 0
    s_cbranch_scc1 L_GNOF
    s_add_u32 s30, %s, 12
    s_lshr_b32 s31, s30, 2
    s_lshl_b32 s31, s31, 10
    s_and_b32 s82, s30, 2
    s_lshl_b32 s82, s82, 5
    s_add_u32 s31, s31, s82
    s_and_b32 s82, s30, 1
    s_lshl_b32 s82, s82, 2
    s_add_u32 s31, s31, s82
    s_add_u32 s31, s31, 0x%x
    v_mov_b32 v1, 1
    s_mov_b64 exec, 1
    buffer_store_dword v1, off, s[4:7], s31 sc1
    s_mov_b64 exec, -1
L_GNOF:""" % (sU, sU, FL_X))
    a("""    v_min_u32 v1, 9, v0
    v_mul_u32_u24 v1, 6, v1
    s_add_u32 s30, %s, 6
    v_add_u32 v1, s30, v1
    v_cmp_lt_u32 vcc, 63, v1
    v_subrev_u32 v2, 6, v1
    v_cndmask_b32 v1, v1, v2, vcc
    v_lshrrev_b32 v2, 1, v1
    v_lshlrev_b32 v2, 10, v2
    v_and_b32 v1, 1, v1
    v_lshl_add_u32 v%d, v1, 6, v2
    s_mov_b32 s82, 0x%x
    buffer_load_dwordx2 %s, v%d, s[4:7], s82 offen sc1""" % (sR, vIn, FL_X, vr(vFl, 2), vIn))
    a("""    v_add_u32 v%d, 0x%x, v%d
    s_mov_b32 %s, 0
    s_mov_b32 %s, 0
    s_lshl_b32 s30, %s, 5
    s_add_u32 s30, s30, %s
    s_lshl_b32 %s, s30, 13
    s_lshl_b32 %s, s30, 14
    s_lshl_b32 s31, s20, 10
    s_add_u32 %s, %s, s31
    s_add_u32 %s, %s, 0x%x
    s_add_u32 %s, %s, %s
    s_add_u32 %s, %s, 0x%x
    s_lshl_b32 s30, %s, 10
    s_lshl_b32 s31, %s, 4
    s_add_u32 s30, s30, s31
    s_lshl_b32 s31, s20, 2
    s_add_u32 s30, s30, s31
    s_add_u32 %s, s30, 0x%x
    s_add_u32 s30, %s, 6
    s_lshl_b32 %s, s30, 15
    s_lshl_b32 s31, s20, 13
    s_add_u32 %s, %s, s31
    s_mov_b32 %s, s31""" % (vF, XB0, VL16, sI, sSeg, sR, sGH, sQo, sKo, sQo, sQo, sQo, sQo, QF, sKo, sKo, sW4, sKo, sKo, KV,
                            sGH, sR, sFo, FL_KV, sR, sXo, sXo, sXo, sMB))
    ACC = lambda t, tt: 8 * t + 4 * tt
    XR = lambda b, tt: 48 + 8 * b + 4 * tt
    rd = lambda k: ["    ds_read_b128 %s, v%d offset:%d" % (vr(XR(k & 1, tt)), vF, (16 * tt + k) * 1024) for tt in range(2)]
    st = lambda d, so, off: "    buffer_store_dwordx4 %s, v%d, s[4:7], %s offen offset:%d sc1" % (vr(d), VL16, so, off)
    OUT = [st(64, sKo, 0), st(68, sKo, 1024), st(80, sKo, 2048), st(84, sKo, 3072), st(72, sQo, 0), st(76, "s83", 0)]
    SPREAD = {2 + i: OUT[i] for i in range(6)}
    FLK = 12
    a("L_GSEG:")
    a("\n".join(rd(0)))
    for k in range(16):
        nxt = rd(k + 1) if k < 15 else []
        ms = []
        for t in range(6):
            for tt in range(2):
                wreg = rr(TILES[t], 4 * k, 4); x = vr(XR(k & 1, tt)); c = vr(ACC(t, tt)) if k else "0"
                ms.append("    v_mfma_f32_16x16x32_bf16 %s, %s, %s, %s" % (vr(ACC(t, tt)), wreg if t < 4 else x, x if t < 4 else wreg, c))
        a("    s_waitcnt lgkmcnt(0)")
        a(ms[0])
        if nxt: a(nxt[0])
        a(ms[1])
        if nxt: a(nxt[1])
        if k == 1:
            a("""    s_add_u32 s30, %s, 1
    s_cmp_ge_u32 s30, %s
    s_cbranch_scc1 L_GND
    s_cmp_eq_u32 %s, 0
    s_cbranch_scc1 L_GXF
L_GXF2:""" % (sI, sN, sI))
            for i in range(8):
                a("    s_add_u32 m0, %s, %d" % (sMB, i * 1024))
                a(ms[2 + i])
                a("    buffer_load_dwordx4 v%d, s[4:7], %s offen sc1 lds" % (VL16, sXo))
                a("    s_add_u32 %s, %s, 1024" % (sXo, sXo))
            a("L_GND2:")
            a("\n".join(ms[10:]))
            a("    s_cmp_eq_u32 %s, 0" % sI)
            gnd = ms[2:10]
        elif k in SPREAD:
            a("\n".join(ms[2:5]))
            a("    s_cbranch_scc1 L_GS%d" % k)
            a(SPREAD[k])
            a("L_GS%d:" % k)
            a("\n".join(ms[5:]))
        elif k == FLK:
            a(ms[2])
            a("""    s_waitcnt vmcnt(0)
    v_mov_b32 v%d, %s
    s_mov_b64 exec, 1
    buffer_store_dword v%d, off, s[4:7], %s sc1
    s_mov_b64 exec, -1""" % (vIn, sI, vIn, sFo))
            a("\n".join(ms[3:]))
        else:
            a("\n".join(ms[2:]))
    cvt = lambda d, s0: "    v_cvt_pk_bf16_f32 v%d, v%d, v%d" % (d, s0, s0 + 1)
    def outfrag(d, s0, s1):
        a(cvt(d, s0)); a(cvt(d + 1, s0 + 2)); a(cvt(d + 2, s1)); a(cvt(d + 3, s1 + 2))
    a("""    s_cmp_eq_u32 %s, 0
    s_cselect_b32 s30, 0, 0x%x
    s_cselect_b32 s31, 0, 0x%x
    s_add_u32 %s, %s, s30
    s_add_u32 %s, %s, s31
    s_add_u32 s83, %s, 4096""" % (sI, 6 * 32 * 8192, 6 * 32 * 16384, sQo, sQo, sKo, sKo, sQo))
    outfrag(72, ACC(0, 0), ACC(1, 0)); outfrag(76, ACC(0, 1), ACC(1, 1))
    outfrag(64, ACC(2, 0), ACC(3, 0)); outfrag(68, ACC(2, 1), ACC(3, 1))
    outfrag(80, ACC(4, 0), ACC(4, 1)); outfrag(84, ACC(5, 0), ACC(5, 1))
    a("""    s_add_u32 %s, %s, 1
    s_add_u32 %s, %s, 0x%x
    s_xor_b32 %s, %s, 0x%x
    v_xor_b32 v%d, 0x%x, v%d
    s_cmp_ge_u32 %s, %s
    s_cbranch_scc1 L_GFIN
    s_barrier
    s_branch L_GSEG""" % (sI, sI, sXo, sXo, 6 * 32768 - 8192, sMB, sMB, XB0, vF, XB0, vF, sI, sN))
    a("L_GND:")
    a("\n".join(gnd))
    a("    s_branch L_GND2")
    a("""L_GXF:
    s_waitcnt vmcnt(0)
    v_and_b32 v%d, v%d, v%d
    v_cmp_eq_u32 vcc, 0, v%d
    s_cbranch_vccz L_GXF2
    buffer_load_dwordx2 %s, v%d, s[4:7], s82 offen sc1""" % (vFl, vFl, vFl + 1, vFl, vr(vFl, 2), vIn))
    spin(a, "L_GXF")
    a("L_GFIN:")
    a("\n".join(OUT))
    a("""    s_waitcnt vmcnt(0)
    v_mov_b32 v%d, %s
    s_mov_b64 exec, 1
    buffer_store_dword v%d, off, s[4:7], %s sc1
    s_mov_b64 exec, -1""" % (vIn, sI, vIn, sFo))
```

```python
MB = 1 << 20
XF   = 0
QF   = 2 * MB
KV   = 18 * MB
KM   = 50 * MB
PR   = 66 * MB
MR   = 67 * MB
PA   = 68 * MB
GG   = 84 * MB
FL   = 86 * MB
FL_X  = FL
FL_KV = FL + 128
FL_M  = FL + 256
FL_G  = FL + 320
FL_A  = FL + 32768
MD   = 87 * MB
TS   = 88 * MB
WS_BYTES = 268435456
NREP = 6
```

```python
from common import *
def ln_rows(a, X, F, T, out=None, n=16, red=None, cnt=512):
    out = X if out is None else out
    pr = lambda b: vr(b, 2)
    for i in range(n):
        a("    v_lshlrev_b32 v%d, 16, v%d\n    v_and_b32 v%d, 0xffff0000, v%d" % (F + 2 * i, X + i, F + 2 * i + 1, X + i))
    def rowsum(r):
        for s in (8, 4, 2, 1):
            a("    v_add_f32_dpp v%d, v%d, v%d row_ror:%d row_mask:0xf bank_mask:0xf" % (r, r, r, s))
    a("    v_pk_add_f32 %s, %s, %s\n    v_pk_add_f32 %s, %s, %s" % (pr(T), pr(F), pr(F + 2), pr(T + 2), pr(F + 4), pr(F + 6)))
    for i in range(4, n): a("    v_pk_add_f32 %s, %s, %s" % (pr(T + 2 * (i & 1)), pr(T + 2 * (i & 1)), pr(F + 2 * i)))
    a("    v_pk_add_f32 %s, %s, %s\n    v_add_f32 v%d, v%d, v%d" % (pr(T), pr(T), pr(T + 2), T, T, T + 1))
    rowsum(T)
    a("    v_mul_f32 v%d, 0x%x, v%d" % (T, 0x3b000000, T))
    for i in range(n):
        a("    v_pk_add_f32 %s, %s, %s op_sel_hi:[1,0] neg_lo:[0,1] neg_hi:[0,1]" % (pr(T + 2), pr(F + 2 * i), pr(T)))
        if i < 2: a("    v_pk_mul_f32 %s, %s, %s" % (pr(T + 4 + 2 * i), pr(T + 2), pr(T + 2)))
        else: a("    v_pk_fma_f32 %s, %s, %s, %s" % (pr(T + 4 + 2 * (i & 1)), pr(T + 2), pr(T + 2), pr(T + 4 + 2 * (i & 1))))
    a("    v_pk_add_f32 %s, %s, %s\n    v_add_f32 v%d, v%d, v%d" % (pr(T + 4), pr(T + 4), pr(T + 6), T + 4, T + 4, T + 5))
    rowsum(T + 4)
    ln_finish(a, F, T, out, n)

def rbf(a, r):
    a("    v_cvt_pk_bf16_f32 v%d, v%d, v%d\n    v_lshlrev_b32 v%d, 16, v%d" % (r, r, r, r, r))

def ln_finish(a, F, T, out, n, stats=True):
    pr = lambda b: vr(b, 2)
    if stats:
        a("    v_mul_f32 v%d, 0x%x, v%d" % (T + 4, 0x3b000000, T + 4))
        rbf(a, T); rbf(a, T + 4)
        a("    v_add_f32 v%d, 0x%x, v%d" % (T + 4, 0x3727c5ac, T + 4))
        rbf(a, T + 4)
        a("    v_sqrt_f32 v%d, v%d" % (T + 4, T + 4))
        rbf(a, T + 4)
        a("    v_rcp_f32 v%d, v%d" % (T + 4, T + 4))
    for i in range(n):
        t = T + 2 + 4 * (i & 1)
        a("""    v_pk_add_f32 %s, %s, %s op_sel_hi:[1,0] neg_lo:[0,1] neg_hi:[0,1]
    v_cvt_pk_bf16_f32 v%d, v%d, v%d
    v_lshlrev_b32 v%d, 16, v%d
    v_and_b32 v%d, 0xffff0000, v%d
    v_pk_mul_f32 %s, %s, %s op_sel_hi:[1,0]
    v_cvt_pk_bf16_f32 v%d, v%d, v%d""" % (pr(t), pr(F + 2 * i), pr(T), t + 1, t, t + 1, t, t + 1, t + 1, t + 1, pr(t), pr(t), pr(T + 4),
                                           out + i, t, t + 1))
```

```python
from common import *
from lnorm import *
import struct, math
f2u = lambda x: struct.unpack("<I", struct.pack("<f", x))[0]
HB = 65536; RING = 98304
AF = lambda b: 16 * b
BF = lambda b: 32 + 8 * b
VA = 48
VT = 56
VD, VD3, VW, VG = 60, 61, 62, 63
AC3 = 64; ACC = 128
sRing = "s25"; sWo = "s26"; sP = "s27"; sTok = "s28"; sCh = "s29"; sC0 = "s[32:33]"; sC1 = "s[34:35]"; sW3 = "s66"; sW4 = "s67"; sLay = "s68"
pr = lambda b: vr(b, 2)
cvt = lambda d, s0, s1=None: "    v_cvt_pk_bf16_f32 v%d, v%d, v%d" % (d, s0, s0 + 1 if s1 is None else s1)
def unpack(a, d, s0): a("    v_lshlrev_b32 v%d, 16, v%d\n    v_and_b32 v%d, 0xffff0000, v%d" % (d, s0, d + 1, s0))

def dma(j, so, vd, step, stagebytes):
    out = []
    for i in range(4):
        out.append("    s_add_u32 m0, %s, %d\n    s_nop 0\n    buffer_load_dwordx4 v%d, s[8:11], %s offen lds\n    s_add_u32 %s, %s, %d" % (sRing, (j & 3) * 4096 + i * 1024, vd, so, so, so, step))
    return out

def gemm(a, n, kind, acc, first_zero, actbase):
    def reads(j):
        b = j & 1; slot = (j & 3) * 4096
        out = []
        if kind == "w":
            for tt in range(2): out.append("    ds_read_b128 %s, v%d offset:%d" % (vr(BF(b) + 4 * tt), VA + (j & 7), actbase(j) + tt * actbase.tile))
            for ct in range(4):
                for q in range(2): out.append("    ds_read_b64_tr_b16 %s, v%d offset:%d" % (vr(AF(b) + 4 * ct + 2 * q, 2), VT + ct, slot + q * 1024))
        else:
            for kk in range(2):
                for ct in range(2):
                    for q in range(2): out.append("    ds_read_b64_tr_b16 %s, v%d offset:%d" % (vr(AF(b) + 8 * kk + 4 * ct + 2 * q, 2), VT + ct, slot + kk * 2048 + q * 512))
        return out
    def areads(k):
        return ["    ds_read_b128 %s, v%d offset:%d" % (vr(BF(k & 1) + 4 * tt), VA + (k & 7), actbase(k) + tt * actbase.tile) for tt in range(2)]
    mf = lambda d, x, y, z: "    v_mfma_f32_32x32x16_bf16 %s, %s, %s, %s" % (vr(d, 16), vr(x), vr(y), "0" if z else vr(d, 16))
    so, vd, step = (sWo, VD, 4096) if kind == "w" else (sW3, VD3, 8 * 2752)
    a("    s_waitcnt vmcnt(8)")
    a("\n".join(reads(0) + (areads(0) if kind == "n" else [])))
    for j in range(n):
        b = j & 1
        d = dma(j + 3, so, vd, step, 0) if j + 3 < n else []
        r = reads(j + 1) if j + 1 < n else []
        if kind == "w":
            ms = [mf(acc + 16 * (2 * ct + tt), AF(b) + 4 * ct, BF(b) + 4 * tt, first_zero and j == 0) for ct in range(4) for tt in range(2)]
            a("    s_waitcnt lgkmcnt(0)")
            for i in range(8):
                a(ms[i])
                if i < 4 and d: a(d[i])
                if i == 3 and r: a("    s_waitcnt vmcnt(%d)" % (4 * (min(j + 3, n - 1) - (j + 1))))
                if i >= 3 and r: a("\n".join(r[2 * (i - 3):2 * (i - 3) + 2]))
        else:
            for kk in range(2):
                k = 2 * j + kk
                ms = [mf(acc + 16 * (2 * ct + tt), AF(b) + 8 * kk + 4 * ct, BF(k & 1) + 4 * tt, first_zero and k == 0) for ct in range(2) for tt in range(2)]
                ar_ = areads(k + 1) if k + 1 < 2 * n else []
                a("    s_waitcnt lgkmcnt(0)")
                for i in range(4):
                    a(ms[i])
                    if i == 0 and ar_: a("\n".join(ar_))
                    if kk == 0 and d: a(d[i])
                    if kk == 1 and r:
                        if i == 0: a("    s_waitcnt vmcnt(%d)" % (4 * (min(j + 3, n - 1) - (j + 1))))
                        if i < 3: a("\n".join(r[3 * i:3 * i + 3]))

class Base:
    def __init__(self, shift, tile): self.shift = shift; self.tile = tile
    def __call__(self, k): return (k >> 3) * 256

def gelu_pack(a, src, dst, t):
    for h in range(2):
        x = src + 2 * h; u = t + 4 * h
        a(cvt(u, x)); unpack(a, x, u)
        a("    v_pk_mul_f32 %s, %s, %s" % (pr(u), pr(x), pr(x)))
        a("    v_pk_fma_f32 %s, %s, %s, %s op_sel_hi:[1,0,0]" % (pr(u), pr(u), sC1, pr(VG - 1)))
        a("    v_pk_mul_f32 %s, %s, %s" % (pr(u), pr(u), pr(x)))
    for h in range(2):
        u = t + 4 * h
        a("    v_exp_f32 v%d, v%d\n    v_exp_f32 v%d, v%d" % (u, u, u + 1, u + 1))
    for h in range(2):
        u = t + 4 * h
        a("    v_pk_add_f32 %s, %s, 1.0 op_sel_hi:[1,0]" % (pr(u), pr(u)))
    for h in range(2):
        u = t + 4 * h
        a("    v_rcp_f32 v%d, v%d\n    v_rcp_f32 v%d, v%d" % (u, u, u + 1, u + 1))
    for h in range(2):
        x = src + 2 * h; u = t + 4 * h
        a("    v_pk_mul_f32 %s, %s, %s" % (pr(u), pr(u), pr(x)))
        a(cvt(dst + h, u))

def mlp(a, opt):
    c0 = -2 * math.sqrt(2 / math.pi) * math.log2(math.e)
    a("""    s_lshl_b32 %s, s20, 14
    s_add_u32 %s, %s, %d
    s_lshl_b32 %s, s21, 16
    s_mov_b32 s34, 0x%x
    s_mov_b32 s35, 0x%x""" % (sRing, sRing, sRing, RING, sTok, f2u(c0 * 0.044715), f2u(c0 * 0.044715)))
    srd(a, S_AUX, P_X, 2 * MB)
    VX = 120; VLB = 121; VGA = 122
    a("""    v_lshrrev_b32 v1, 4, v0
    s_lshl_b32 s30, s20, 2
    v_add_u32 v1, s30, v1                       ; 4w + (lane>>4)
    v_and_b32 v2, 15, v0
    v_lshlrev_b32 v3, 10, v1
    v_lshl_add_u32 v%d, v2, 4, v3
    s_sub_u32 s30, %s, 2048
    v_add_u32 v%d, s30, v%d
    v_xor_b32 v4, v2, v1
    v_lshl_add_u32 v%d, v4, 4, v3""" % (VGA, sTok, VX, VGA, VLB))
    for i in range(4): a("    buffer_load_dwordx4 %s, v%d, s[16:19], 0 offen offset:%d" % (vr(96 + 4 * i), VX, 256 * i))
    a("""    s_lshl_b32 s30, s21, 2
    s_add_u32 s30, s30, s20
    s_lshl_b32 s30, s30, 13
    v_lshlrev_b32 v5, 7, v0""")
    for p, nb in ((P_W1, 524288), (P_W2, 524288), (P_W3, 1409024), (P_W4, 1409024)):
        srd(a, S_W, p, nb)
        if nb == 524288:
            a("    s_lshr_b32 s31, s30, 1\n    v_lshrrev_b32 v6, 1, v5\n    buffer_load_dword v7, v6, s[8:11], s31 offen")
        else:
            a("    buffer_load_dword v7, v5, s[8:11], s30 offen\n    s_add_u32 s31, s30, 0x100000\n    buffer_load_dword v7, v5, s[8:11], s31 offen")
    a("""    v_lshrrev_b32 v1, 4, v0
    v_lshlrev_b32 v3, 2, v1
    v_xor_b32 v3, v3, v2
    v_lshlrev_b32 v3, 4, v3
    v_lshl_add_u32 v%d, v1, 10, v3
    v_lshrrev_b32 v3, 3, v0
    v_mul_u32_u24 v3, 2752, v3
    v_and_b32 v4, 7, v0
    v_and_b32 v6, 1, v1
    v_lshlrev_b32 v6, 2, v6
    v_xor_b32 v4, v4, v6
    v_lshl_add_u32 v%d, v4, 4, v3""" % (VD, VD3))
    srd(a, S_W, P_W1, 524288)
    a("    s_lshl_b32 %s, s20, 8" % sWo)
    for j in range(3): a("\n".join(dma(j, sWo, VD, 4096, 0)))
    a("    s_mov_b32 %s, 0\n    s_waitcnt vmcnt(18)\nL_BLN:" % sP)
    for i in range(16): a("    v_mov_b32 v%d, v%d" % (16 + i, 96 + i))
    a("    v_add_u32 v%d, 0x4000, v%d" % (VX, VX))
    for i in range(4): a("    buffer_load_dwordx4 %s, v%d, s[16:19], 0 offen offset:%d" % (vr(96 + 4 * i), VX, 256 * i))
    ln_rows(a, 16, 64, 112)
    a("""    v_subrev_u32 v1, 0x4000, v%d
    v_subrev_u32 v2, %s, v1
    v_cmp_gt_u32 vcc, 0x10000, v2
    v_cndmask_b32 v1, -1, v1, vcc
    v_and_b32 v1, 0x7ffffff0, v1
    s_mov_b32 s30, 0x%x""" % (VX, sTok, GG))
    for i in range(4): a("    buffer_store_dwordx4 %s, v1, s[4:7], s30 offen offset:%d" % (vr(16 + 4 * i), 256 * i))
    ln_rows(a, 16, 64, 112, out=32)
    for i in range(4): a("    ds_write_b128 v%d, %s offset:%d" % (VLB, vr(32 + 4 * i), 256 * i))
    a("""    v_add_u32 v%d, 0x4000, v%d
    s_add_u32 %s, %s, 1
    s_cmp_eq_u32 s20, 0
    s_cselect_b32 s30, 5, 4
    s_cmp_lt_u32 %s, s30
    s_waitcnt vmcnt(4)
    s_cbranch_scc1 L_BLN""" % (VLB, VLB, sP, sP, sP))
    def act_addr(shift_sgpr, base, rowbytes_log):
        a("""    v_mbcnt_lo_u32_b32 v0, -1, 0
    v_mbcnt_hi_u32_b32 v0, -1, v0
    v_and_b32 v1, 31, v0""")
        if shift_sgpr: a("    v_add_u32 v1, %s, v1" % shift_sgpr)
        a("""    v_lshrrev_b32 v2, 5, v0
    v_and_b32 v3, 15, v1
    v_xor_b32 v2, v2, v3
    v_lshlrev_b32 v2, 4, v2
    v_lshl_add_u32 v1, v1, %d, v2""" % rowbytes_log)
        if base: a("    v_add_u32 v1, 0x%x, v1" % base)
        for k in range(8): a("    v_xor_b32 v%d, %d, v1" % (VA + k, 32 * k))
    def tr_addr(kind):
        a("""    v_mbcnt_lo_u32_b32 v0, -1, 0
    v_mbcnt_hi_u32_b32 v0, -1, v0
    v_bfe_u32 v1, v0, 2, 2                      ; r
    v_lshrrev_b32 v2, 5, v0
    v_lshl_add_u32 v2, v2, 3, v1                ; 8kg + r
    v_lshlrev_b32 v2, %d, v2""" % (8 if kind == "w" else 7))
        if kind == "n": a("    v_lshrrev_b32 v1, 1, v1")
        a("""    v_lshl_add_u32 v2, v1, 6, v2
    v_bfe_u32 v1, v0, 4, 1
    v_lshl_add_u32 v2, v1, 5, v2
    v_and_b32 v1, 3, v0
    v_lshl_add_u32 v2, v1, 3, v2
    v_add_u32 v2, %s, v2""" % sRing)
        for ct in range(4 if kind == "w" else 2): a("    v_xor_b32 v%d, %d, v2" % (VT + ct, ct << 6))
    def wr_addr(rowlog, base, colshift):
        a("""    v_mbcnt_lo_u32_b32 v0, -1, 0
    v_mbcnt_hi_u32_b32 v0, -1, v0
    v_and_b32 v1, 31, v0
    v_and_b32 v2, 15, v0
    s_lshl_b32 s30, s20, %d
    s_and_b32 s31, s30, 15
    v_xor_b32 v2, s31, v2
    v_lshlrev_b32 v2, 4, v2
    v_lshl_add_u32 v2, v1, %d, v2
    v_lshrrev_b32 v1, 5, v0
    v_lshl_add_u32 v2, v1, 3, v2
    s_lshr_b32 s30, s30, 4
    s_lshl_b32 s30, s30, 8
    s_add_u32 s30, s30, 0x%x
    v_add_u32 v%d, s30, v2""" % (colshift, rowlog, base, VW))
    a("""    s_mov_b32 s30, 0x04000301
    s_lshl_b32 s31, s20, 3
    s_lshr_b32 s30, s30, s31
    s_and_b32 s69, s30, 7""")
    act_addr("s69", 0, 10)
    tr_addr("w")
    wide = Base(0, 32768)
    a("    s_mov_b32 %s, 0\n    s_waitcnt lgkmcnt(0)\n    s_barrier" % sLay)
    a("L_B12:")
    gemm(a, 32, "w", ACC, True, wide)
    a("    s_cmp_lg_u32 %s, 0\n    s_cbranch_scc1 L_B2E" % sLay)
    a("    s_mov_b32 s8, s%d\n    s_mov_b32 s9, s%d\n    s_lshl_b32 %s, s20, 8" % (P_W2, P_W2 + 1, sWo))
    for j in range(3): a("\n".join(dma(j, sWo, VD, 4096, 0)))
    wr_addr(10, 0, 4)
    a("    v_mov_b32 v%d, v%d\n    v_mov_b32 v%d, 0x%x" % (40, VW, VG - 1, f2u(c0)))
    for ct in range(4):
        for tt in range(2):
            t0 = ACC + 16 * (2 * ct + tt)
            for q in range(4): gelu_pack(a, t0 + 4 * q, t0 + 2 * q, 0)
    a("    s_barrier")
    def write_tiles(acc, nct, vw, tile):
        for ct in range(nct):
            for q in range(4):
                a("    v_xor_b32 v1, %d, v%d" % ((4 * ct + q) << 4, vw))
                for tt in range(2): a("    ds_write_b64 v1, %s offset:%d" % (vr(acc + 16 * (2 * ct + tt) + 2 * q, 2), tt * tile))
    write_tiles(ACC, 4, 40, 32768)
    act_addr(None, 0, 10)
    a("    s_mov_b32 %s, 1\n    s_waitcnt lgkmcnt(0)\n    s_barrier\n    s_branch L_B12" % sLay)
    a("L_B2E:")
    a("""    v_mbcnt_lo_u32_b32 v0, -1, 0
    v_mbcnt_hi_u32_b32 v0, -1, v0
    v_and_b32 v1, 31, v0
    v_lshlrev_b32 v1, 10, v1
    v_lshrrev_b32 v2, 5, v0
    v_lshl_add_u32 v%d, v2, 3, v1
    s_lshl_b32 s30, s20, 8
    s_add_u32 s30, s30, %s
    s_add_u32 %s, s30, 0x%x
    s_add_u32 s31, %s, 0x8000""" % (VG, sTok, sP, GG, sP))
    for ct in range(4):
        for tt in range(2):
            for q in range(4):
                a("    buffer_load_dwordx2 %s, v%d, s[4:7], %s offen offset:%d sc1" % (vr(64 + 8 * (2 * ct + tt) + 2 * q, 2), VG, "s31" if tt else sP, 64 * ct + 16 * q))
    srd(a, S_W, P_W3, 1409024)
    a("    s_lshl_b32 %s, s20, 7" % sW3)
    for j in range(3): a("\n".join(dma(j, sW3, VD3, 8 * 2752, 0)))
    for tt in range(2): a("    v_mov_b64 %s, 0\n    v_mov_b64 %s, 0" % (pr(8 + 4 * tt), pr(10 + 4 * tt)))
    a("    s_waitcnt vmcnt(12)")
    for ti in range(8):
        tt = ti & 1
        for j in range(8):
            x = ACC + 16 * ti + 2 * j; xn = 64 + 8 * ti + j
            a(cvt(0, x)); unpack(a, x, 0); unpack(a, 2, xn)
            a("    v_pk_add_f32 %s, %s, %s" % (pr(x), pr(x), pr(2)))
            a(cvt(0, x)); unpack(a, x, 0)
            a("    v_accvgpr_write_b32 a%d, v0" % (8 * ti + j))
            a("    v_pk_add_f32 %s, %s, %s\n    v_pk_fma_f32 %s, %s, %s, %s" % (pr(8 + 4 * tt), pr(8 + 4 * tt), pr(x), pr(10 + 4 * tt), pr(x), pr(x), pr(10 + 4 * tt)))
    for tt in range(2):
        a("    v_add_f32 v%d, v%d, v%d\n    v_add_f32 v%d, v%d, v%d" % (16 + 2 * tt, 8 + 4 * tt, 9 + 4 * tt, 17 + 2 * tt, 10 + 4 * tt, 11 + 4 * tt))
    for i in range(4): a("    v_mov_b32 v%d, v%d" % (20 + i, 16 + i))
    for i in range(4): a("    v_permlane32_swap_b32 v%d, v%d" % (16 + i, 20 + i))
    for i in range(4): a("    v_add_f32 v%d, v%d, v%d" % (16 + i, 16 + i, 20 + i))
    a("""    v_mbcnt_lo_u32_b32 v0, -1, 0
    v_mbcnt_hi_u32_b32 v0, -1, v0
    v_and_b32 v1, 31, v0
    v_lshlrev_b32 v1, 4, v1
    v_add_u32 v1, 0x%x, v1
    s_lshl_b32 s30, s20, 14
    v_add_u32 v2, s30, v1
    ds_write_b128 v2, v[16:19]
    s_waitcnt lgkmcnt(0)
    s_barrier""" % (RING + 3 * 4096))
    for q in range(4): a("    ds_read_b128 %s, v1 offset:%d" % (vr(16 + 4 * q), q * 16384))
    wr_addr(10, 0, 4)
    a("    v_mov_b32 v40, v%d\n    s_waitcnt lgkmcnt(0)" % VW)
    for q in range(1, 4): a("    v_pk_add_f32 v[16:17], v[16:17], %s\n    v_pk_add_f32 v[18:19], v[18:19], %s" % (pr(16 + 4 * q), pr(18 + 4 * q)))
    for tt in range(2):
        T = 8
        a("""    v_mul_f32 v%d, 0x3b000000, v%d
    v_mul_f32 v%d, v%d, v%d
    v_sub_f32 v%d, v%d, v%d
    v_max_f32 v%d, 0, v%d""" % (T, 16 + 2 * tt, T + 4, T, 16 + 2 * tt, T + 4, 17 + 2 * tt, T + 4, T + 4, T + 4))
        for ct in range(4):
            t0 = ACC + 16 * (2 * ct + tt)
            if ct == 0: ln_finish(a, t0, T, t0, 8)
            else: ln_finish(a, t0, T, t0, 8, stats=False)
    write_tiles(ACC, 4, 40, 32768)
    a("""    s_mov_b32 %s, 0
    s_lshl_b32 %s, s20, 8
    v_mov_b32 v%d, 0x%x""" % (sCh, sW4, VG - 1, f2u(c0)))
    for i in range(0, 128, 2): a("    v_mov_b64 %s, 0" % pr(ACC + i))
    a("    s_waitcnt lgkmcnt(0)\n    s_barrier")
    a("L_B34:")
    act_addr(None, 0, 10)
    tr_addr("n")
    gemm(a, 16, "n", AC3, True, wide)
    a("    s_mov_b32 s8, s%d\n    s_mov_b32 s9, s%d\n    s_mov_b32 %s, %s" % (P_W4, P_W4 + 1, sWo, sW4))
    for j in range(3): a("\n".join(dma(j, sWo, VD, 4096, 0)))
    for ct in range(2):
        for tt in range(2):
            t0 = AC3 + 16 * (2 * ct + tt)
            for q in range(4): gelu_pack(a, t0 + 4 * q, t0 + 2 * q, 0)
    a("    v_mov_b32 v41, v%d" % (VG - 1))
    wr_addr(9, HB, 3)
    a("    v_mov_b32 v40, v%d\n    v_mov_b32 v%d, v41\n    s_barrier" % (VW, VG - 1))
    write_tiles(AC3, 2, 40, 16384)
    act_addr(None, HB, 9)
    tr_addr("w")
    a("    s_waitcnt lgkmcnt(0)\n    s_barrier")
    gemm(a, 16, "w", ACC, False, Base(0, 16384))
    a("""    s_add_u32 %s, %s, 1
    s_add_u32 %s, %s, 0x40000
    s_cmp_ge_u32 %s, 6
    s_cbranch_scc1 L_BFIN
    s_mov_b32 s8, s%d
    s_mov_b32 s9, s%d
    s_lshl_b32 %s, %s, 9
    s_lshl_b32 s30, s20, 7
    s_add_u32 %s, %s, s30""" % (sCh, sCh, sW4, sW4, sCh, P_W3, P_W3 + 1, sW3, sCh, sW3, sW3))
    for j in range(3): a("\n".join(dma(j, sW3, VD3, 8 * 2752, 0)))
    a("    s_branch L_B34")
    a("L_BFIN:\n    s_add_u32 s31, %s, 0x8000\n    s_mov_b32 s34, 0x%x" % (sP, f2u(-math.log2(math.e))))
    for ti in range(8):
        ct, tt = ti >> 1, ti & 1
        for q in range(4):
            for h in range(2):
                x = ACC + 16 * ti + 4 * q + 2 * h; u = 4 * h
                a("    v_accvgpr_read_b32 v%d, a%d" % (u + 2, 8 * ti + 2 * q + h))
                a(cvt(u, x)); unpack(a, x, u); unpack(a, u, u + 2)
                a("    v_pk_add_f32 %s, %s, %s" % (pr(x), pr(x), pr(u)))
                a(cvt(u, x)); unpack(a, x, u)
                a("    v_pk_mul_f32 %s, %s, %s op_sel_hi:[1,0]" % (pr(u), pr(x), sC1))
                a("    v_exp_f32 v%d, v%d\n    v_exp_f32 v%d, v%d" % (u, u, u + 1, u + 1))
                a("    v_pk_add_f32 %s, %s, 1.0 op_sel_hi:[1,0]" % (pr(u), pr(u)))
                a("    v_rcp_f32 v%d, v%d\n    v_rcp_f32 v%d, v%d" % (u, u, u + 1, u + 1))
                a("    v_pk_mul_f32 %s, %s, %s" % (pr(u), pr(u), pr(x)))
                a(cvt(8 + 2 * (q & 1) + h, u))
            a("    buffer_store_dwordx2 %s, v%d, s[4:7], %s offen offset:%d sc1" % (pr(8 + 2 * (q & 1)), VG, "s31" if tt else sP, 64 * ct + 16 * q))
    a("""    s_waitcnt vmcnt(0)
    s_barrier
    s_cmp_lg_u32 s20, 0
    s_cbranch_scc1 L_BEND
L_BINI:
    buffer_load_dword v1, off, s[12:15], 0 offset:%d sc1
    s_waitcnt vmcnt(0)
    v_readfirstlane_b32 s30, v1
    s_cmp_ge_u32 s30, 32
    s_cbranch_scc1 L_BINI2""" % DBG_INIT)
    spin(a, "L_BINI")
    a("""L_BINI2:
    s_lshl_b32 s30, s21, 10
    s_add_u32 s30, s30, 0x%x
    v_mov_b32 v1, 1
    s_mov_b64 exec, 1
    buffer_store_dword v1, off, s[4:7], s30 sc1""" % FL_G)
    if opt.get("time"):
        a("""    s_memrealtime s[98:99]
    s_waitcnt lgkmcnt(0)
    v_mov_b32 v0, s96
    v_mov_b32 v1, s98
    s_lshl_b32 s30, s21, 4
    s_add_u32 s30, s30, 0x%x
    buffer_store_dwordx2 v[0:1], off, s[4:7], s30""" % (TS + 12288))
    if opt.get("hdbg"): hstamp(a, 14)
    a("L_BEND:")
```

```python
import sys
from asmlib import Asm
from common import *
import chain, gq
def build(out, opt):
    a = Asm(1)
    prologue(a, opt)
    if opt.get("time"): a("    s_memrealtime s[96:97]")
    a("    s_cmp_eq_u32 s23, 0\n    s_cbranch_scc0 L_NOTC")
    chain.chain(a, dict(opt, k1=1, k2=1, p1=21, pm=-1, p2a=16))
    a("L_NOTC:\n    s_cmp_eq_u32 s23, 1\n    s_cbranch_scc1 L_ROLEB")
    gq.gq(a, opt)
    if opt.get("time"):
        a("""    s_memrealtime s[98:99]
    s_memtime s[90:91]
    s_waitcnt lgkmcnt(0)
    v_mov_b32 v0, s96
    v_mov_b32 v1, s98
    v_mov_b32 v2, s94
    s_sub_u32 s30, s90, s92
    v_mov_b32 v3, s30
    s_lshl_b32 s30, s25, 4
    s_add_u32 s30, s30, 0x%x
    s_mov_b64 exec, 1
    buffer_store_dwordx4 v[0:3], off, s[4:7], s30
    s_mov_b64 exec, -1""" % (TS + 8192))
    if opt.get("A"):
        import attn
        attn.attn(a, opt)
    a("    s_waitcnt vmcnt(0)\n    s_endpgm")
    a("L_ROLEB:")
    if opt.get("B"):
        import mlp
        mlp.mlp(a, opt)
    a("    s_waitcnt vmcnt(0)\n    s_endpgm")
    epilogue(a)
    n = a.fix(verbose=opt.get("v"))
    open(out, "w").write(wrap(a.text()))
    print(out, "nops", n, "lines", len(a.ins))
if __name__ == "__main__":
    for spec in sys.argv[1:]:
        name, _, o = spec.partition(":")
        opt = {}
        for kv in o.split(","):
            if not kv: continue
            k, _, v = kv.partition("=")
            opt[k] = int(v) if v else 1
        build(name if "/" in name else "exp/%s.s" % name, opt)
```

```python
from layout import *
KN = "recurrent_scan__memory_aug_recurrent_mem_tr__mixer_s_mlp__prompt_kernel"

def vr(b, n=4): return "v[%d:%d]" % (b, b + n - 1) if n > 1 else "v%d" % b
def ar(b, n=4): return "a[%d:%d]" % (b, b + n - 1) if n > 1 else "a%d" % b
def rr(x, off=0, n=8):
    k, b = x
    return "%s[%d:%d]" % (k, b + off, b + off + n - 1)

S_WS = "s[4:7]"; S_W = "s[8:11]"; S_DBG = "s[12:15]"; S_AUX = "s[16:19]"
sW = "s20"
sH = "s21"
sXCC = "s23"
sTMO = "s24"
P_X, P_MEM0, P_WQ, P_WK, P_WV, P_WO, P_SEG, P_BX, P_W1, P_W2, P_W3, P_W4, P_OUT, P_DBG, P_WSP = [36 + 2 * i for i in range(15)]
DBG_INIT = 32
DBG_READY = 36
DBG_ERR = 40

def srd(a, q, ptr, nbytes):
    b = int(q[2:q.index(":")])
    a("    s_mov_b32 s%d, s%d" % (b, ptr))
    a("    s_mov_b32 s%d, s%d" % (b + 1, ptr + 1))
    a("    s_mov_b32 s%d, 0x%x" % (b + 2, nbytes))
    a("    s_mov_b32 s%d, 0x00020000" % (b + 3))

def prologue(a, opt={}):
    a("""    s_cmp_ge_u32 s2, 256
    s_cbranch_scc1 L_END""")
    if opt.get("hdbg"): a("    s_memrealtime s[100:101]")
    if opt.get("ipf"):
        a("""    s_getpc_b64 s[28:29]
    s_lshr_b32 s3, s2, 3
    s_and_b32 s3, s3, 7
    s_lshl_b32 s3, s3, 14
    v_lshlrev_b32 v3, 6, v0
    v_add_u32 v3, s3, v3
    v_min_u32 v3, L_END - L_PC, v3
    s_and_b32 s28, s28, 0xffffffc0
L_PC:
    global_load_dword v4, v3, s[28:29]""")
    a("""    s_load_dwordx16 s[36:51], s[0:1], 0
    s_load_dwordx8 s[52:59], s[0:1], 64
    s_load_dwordx4 s[60:63], s[0:1], 96
    s_load_dwordx2 s[64:65], s[0:1], 112
    s_getreg_b32 s23, hwreg(HW_REG_XCC_ID)
    v_lshrrev_b32 v1, 6, v0
    s_and_b32 s23, s23, 7
    v_readfirstlane_b32 s20, v1
    s_lshl_b32 s3, s23, 1
    s_lshr_b32 s3, 0x79e4, s3
    s_and_b32 s3, s3, 3
    s_lshl_b32 s3, s3, 6
    s_lshl_b32 s22, s23, 2
    s_add_u32 s3, s3, s22
    s_mov_b32 s24, 0x200000
    v_and_b32 v0, 63, v0
    s_waitcnt lgkmcnt(0)""")
    srd(a, S_WS, P_WSP, WS_BYTES)
    srd(a, S_DBG, P_DBG, 256)
    srd(a, S_W, P_WQ, 4 * MB)
    srd(a, S_AUX, P_MEM0, 8192)
    a("""    v_mov_b32 v2, 0
    s_cmp_lg_u32 s20, 0
    s_cbranch_scc1 L_TK1
    s_mov_b64 exec, 1
    v_mov_b32 v1, 1
    buffer_atomic_add v1, off, s[12:15], s3 sc0 sc1
    s_waitcnt vmcnt(0)
    ds_write_b32 v2, v1
    s_waitcnt lgkmcnt(0)
    s_mov_b64 exec, -1
L_TK1:
    s_barrier
    ds_read_b32 v1, v2
    s_waitcnt lgkmcnt(0)
    v_readfirstlane_b32 s21, v1
    s_barrier
    s_cmp_ge_u32 s21, 32
    s_cbranch_scc1 L_END""")

def epilogue(a):
    a("""L_ABORT:
    s_mov_b64 exec, 1
    v_mov_b32 v1, 1
    buffer_atomic_add v1, off, s[12:15], 0 offset:%d sc1
    s_waitcnt vmcnt(0)
L_END:
    s_endpgm""" % DBG_ERR)

def spin(a, retry_label):
    a("""    s_sub_u32 s24, s24, 1
    s_cbranch_scc1 L_ABORT
    s_branch %s""" % retry_label)

def wrap(body_text, launch="grid=(256,1,1) block=(256,1,1) lds=163840"):
    ref = open("recurrent_scan__memory_aug_recurrent_mem_tr__mixer_s_mlp__prompt.s.ref").read()
    head = ref[:ref.index("; @launch")]
    return (head + "; @launch " + launch + "\n" + '.amdgcn_target "amdgcn-amd-amdhsa--gfx950"\n.text\n.globl %s\n.p2align 8\n.type %s,@function\n%s:\n' % (KN, KN, KN)
            + body_text +
            '.section .rodata,"a"\n.p2align 6\n.amdhsa_kernel %s\n  .amdhsa_next_free_vgpr 512\n  .amdhsa_next_free_sgpr 102\n  .amdhsa_accum_offset 256\n'
            '  .amdhsa_group_segment_fixed_size 0\n  .amdhsa_kernarg_size 120\n  .amdhsa_user_sgpr_count 2\n  .amdhsa_user_sgpr_kernarg_segment_ptr 1\n'
            '  .amdhsa_system_sgpr_workgroup_id_x 1\n  .amdhsa_float_denorm_mode_32 3\n.end_amdhsa_kernel\n' % KN)

def hstamp(a, slot, reg=None, neg=False):
    if reg is None:
        a("    s_memrealtime s[98:99]\n    s_waitcnt lgkmcnt(0)"); reg = "s98"
    a("    s_mov_b64 exec, 1\n    v_mov_b32 v1, %s" % reg)
    if neg: a("    v_not_b32 v1, v1")
    a("    buffer_atomic_umax v1, off, s[12:15], 0 offset:%d sc1\n    s_waitcnt vmcnt(0)\n    s_mov_b64 exec, -1" % (4 * slot))
```
